```python
import torch

def _softmax(x, axis=-1):
    return torch.softmax(x, dim=axis)
def _gelu(x):
    return torch.nn.functional.gelu(x, approximate="tanh")
def _silu(x):
    return torch.nn.functional.silu(x)
def _sigmoid(x):
    return torch.sigmoid(x)
def _layernorm(x, axis=-1, eps=1e-5):
    m = x.mean(dim=axis, keepdim=True)
    v = x.var(dim=axis, keepdim=True, unbiased=False)
    return (x - m) / torch.sqrt(v + eps)
def _scatter_add(tgt, idx, src, axis=0):
    return tgt.clone().index_add_(axis, idx, src)
def _segment_sum(src, seg, n):
    out = torch.zeros((n,) + src.shape[1:], dtype=src.dtype)
    return out.index_add_(0, seg, src)
def _pad(x, pw):
    flat = tuple(v for pair in reversed(pw) for v in pair)
    return torch.nn.functional.pad(x, flat)

kernel_name = 'gated_mix__gqa_block_cached__dense_activation_gelu__decode'

def setup_inputs():

    _w = (lambda a: (lambda t: t.to(torch.bfloat16) if t.is_floating_point() else t)(torch.as_tensor(a)))
    def _A_setup():
        B, Sq, D = 4, 1, 512
        Hq, Hkv, Sk, Dh = 32, 8, 8192, 128
        assert Hq % Hkv == 0, (Hq, Hkv)
        return {
            "x": _w((lambda *s: torch.randn(*s, dtype=torch.bfloat16) * 0.05)(B, Sq, D)),
            "k_cache": _w((lambda *s: torch.randn(*s, dtype=torch.bfloat16) * 6.4)(B, Hkv, Sk, Dh)),
            "v_cache": _w((lambda *s: torch.randn(*s, dtype=torch.bfloat16) * 0.1)(B, Hkv, Sk, Dh)),
            "wq": _w((lambda *s: torch.randn(*s, dtype=torch.bfloat16) * 6.4)(D, Hq * Dh) * (D ** -0.5)),
            "wo": _w((lambda *s: torch.randn(*s, dtype=torch.bfloat16) * 0.1)(Hq * Dh, D) * ((Hq * Dh) ** -0.5)),
        }
    _A_in = _A_setup()

    def _B_setup():
        B, S, D, F = 4, 1, 512, 1792
        return {
            "x": _w((lambda *s: torch.randn(*s, dtype=torch.bfloat16) * 0.05)(B, S, D)),
            "w1": _w((lambda *s: torch.randn(*s, dtype=torch.bfloat16) * 3.2)(D, F) * (D ** -0.5)),
            "b1": _w((lambda *s: torch.randn(*s, dtype=torch.bfloat16) * 3.2)(F) * 0.01),
            "w2": _w((lambda *s: torch.randn(*s, dtype=torch.bfloat16) * 0.05)(F, D) * (F ** -0.5)),
            "b2": _w((lambda *s: torch.randn(*s, dtype=torch.bfloat16) * 0.1)(D) * 0.01),
        }
    _B_in = _B_setup()

    return {
        "A_x": _A_in["x"],
        "A_k_cache": _A_in["k_cache"],
        "A_v_cache": _A_in["v_cache"],
        "A_wq": _A_in["wq"],
        "A_wo": _A_in["wo"],
        "B_x": _B_in["x"],
        "B_w1": _B_in["w1"],
        "B_b1": _B_in["b1"],
        "B_w2": _B_in["w2"],
        "B_b2": _B_in["b2"],
        "gate_w": _w((lambda *s: torch.randn(*s, dtype=torch.bfloat16) * 0.05)(512) * 16.0),
    }

def reference(A_x, A_k_cache, A_v_cache, A_wq, A_wo, B_x, B_w1, B_b1, B_w2, B_b2, gate_w):
    def _A_ref(x, k_cache, v_cache, wq, wo):
        B, Sq, D = x.shape
        Hq, Dh = 32, 128
        Hkv = k_cache.shape[1]
        rep = Hq // Hkv
        q = (lambda x, *d: x.permute(*d))((x @ wq).reshape(B, Sq, Hq, Dh), 0, 2, 1, 3)
        k = (lambda x, n, axis: torch.repeat_interleave(x, n, dim=axis))(k_cache, rep, axis=1)
        v = (lambda x, n, axis: torch.repeat_interleave(x, n, dim=axis))(v_cache, rep, axis=1)
        scores = torch.einsum("bhqd,bhkd->bhqk", q, k) * (Dh ** -0.5)
        p = _softmax(scores, axis=-1)
        o = torch.einsum("bhqk,bhkd->bhqd", p, v)
        return (lambda x, *d: x.permute(*d))(o, 0, 2, 1, 3).reshape(B, Sq, Hq * Dh) @ wo

    def _B_ref(x, w1, b1, w2, b2):
        h = torch.einsum("bsd,df->bsf", x, w1) + b1
        h = _gelu(h)
        return torch.einsum("bsf,fd->bsd", h, w2) + b2

    x = A_x
    g = _sigmoid((x * gate_w).sum(-1, keepdims=True))
    a = _A_ref(x, A_k_cache, A_v_cache, A_wq, A_wo)
    b = _B_ref(x, B_w1, B_b1, B_w2, B_b2)
    return g * a + (1 - g) * b
```

```python
import re, subprocess, os, tempfile

TRANS = ("v_exp_f32","v_log_f32","v_rcp_f32","v_rsq_f32","v_sqrt_f32","v_sin_f32","v_cos_f32","v_rcp_iflag_f32")
def _regs(tok):
    tok = tok.strip()
    neg = tok.startswith("-")
    if neg: tok = tok[1:]
    if tok.startswith("abs("): tok = tok[4:-1]
    if tok.startswith("|"): tok = tok.strip("|")
    m = re.fullmatch(r"([vsa])(\d+)", tok)
    if m: return {(m.group(1), int(m.group(2)))}
    m = re.fullmatch(r"([vsa])\[(\d+):(\d+)\]", tok)
    if m: return {(m.group(1), k) for k in range(int(m.group(2)), int(m.group(3)) + 1)}
    if tok == "vcc": return {("s", "vcc")}
    if tok == "exec": return {("s", "exec")}
    if tok == "m0": return {("s", "m0")}
    return set()

class I:
    def __init__(s, line):
        s.line = line
        t = line.split(";")[0].strip()
        s.is_inst = bool(t) and not t.endswith(":") and not t.startswith(".")
        s.op = ""; s.dst = set(); s.src = set(); s.kind = "none"; s.ws = 0
        s.dpp = False; s.srcA=set(); s.srcC=set()
        if not s.is_inst: return
        p = t.split(None, 1); s.op = op = p[0]
        rest = p[1] if len(p) > 1 else ""
        ops = [o.strip() for o in rest.split(",")] if rest else []
        if ops:
            last = ops[-1].split()
            s.mods = last[1:]; ops[-1] = last[0] if last else ""
        else: s.mods = []
        R = [_regs(o) for o in ops]
        s.ws = 1
        if op == "s_nop": s.kind = "nop"; s.ws = int(ops[0], 0) + 1; return
        if op.startswith("v_mfma"):
            s.kind = "mfma"; s.dst = R[0]; s.srcA = R[1] | R[2]; s.srcC = R[3]; s.src = s.srcA | s.srcC
            s.passes = 8 if "32x32" in op else 4
        elif op.startswith("v_"):
            s.kind = "valu"; base = op.replace("_e32","").replace("_e64","").replace("_dpp","")
            s.dpp = "_dpp" in op
            s.trans = base in TRANS
            if base.startswith("v_permlane") and "swap" in base:
                s.dst = R[0] | R[1]; s.src = R[0] | R[1]; s.perm = True
            elif base.startswith("v_cmp"):
                s.dst = R[0]; s.src = set().union(*R[1:])
            else:
                s.dst = R[0]; s.src = set().union(*R[1:]) if len(R) > 1 else set()
                if base in ("v_fmac_f32","v_writelane_b32") or (s.dpp): s.src |= R[0]
                if base.startswith("v_add_co") or base.startswith("v_addc_co"): s.dst |= R[1]
            s.rdlane = base in ("v_readlane_b32","v_readfirstlane_b32")
            s.cnd = base == "v_cndmask_b32"
        elif op.startswith("ds_"):
            s.kind = "ds"
            if op.startswith("ds_read") or "permute" in op or "swizzle" in op: s.dst = R[0]; s.src = set().union(*R[1:])
            else: s.src = set().union(*R)
        elif op.startswith("buffer_") or op.startswith("global_"):
            s.kind = "vmem"; s.lds = ("lds" in s.mods) or ("_lds_" in op)
            if "load" in op and not s.lds: s.dst = R[0]; s.src = set().union(*R[1:])
            else: s.src = set().union(*R) if R else set()
            s.widestore = ("store_dwordx4" in op or "store_dwordx3" in op)
            if s.widestore: s.sdata = R[0] if op.startswith("buffer_") else R[1]
        elif op.startswith("s_"):
            s.kind = "salu"
            if op.startswith(("s_cmp","s_cbranch","s_branch","s_waitcnt","s_barrier","s_sleep","s_setprio","s_endpgm")):
                s.src = set().union(*R) if R else set()
            else:
                s.dst = R[0] if R else set(); s.src = set().union(*R[1:]) if len(R) > 1 else set()
                if "saveexec" in op: s.dst |= {("s","exec")}

def need(p, c):
    n = 0
    V = lambda S: {r for r in S if r[0] in "va"}
    S_ = lambda S: {r for r in S if r[0] == "s"}
    if p.kind == "valu":
        vd = V(p.dst); sd = S_(p.dst)
        if c.kind == "mfma" and vd & c.src: n = max(n, 2)
        if c.kind == "valu":
            if c.dpp and vd & V(c.src): n = max(n, 2)
            if getattr(c, "perm", False) and vd & V(c.src): n = max(n, 2)
            if c.rdlane and vd & V(c.src): n = max(n, 1)
            if p.trans and not c.trans and vd & V(c.src): n = max(n, 1)
            if sd & S_(c.src): n = max(n, 4 if c.rdlane else 2)
            if c.cnd and ("s","vcc") in sd and (("s","vcc") in c.src): n = max(n, 2)
        if c.kind in ("vmem","ds") and p.trans and vd & V(c.src): n = max(n, 1)
        if c.kind == "vmem" and sd & S_(c.src): n = max(n, 5)
        if c.kind == "salu" and sd & S_(c.src): n = max(n, 1)
    if p.kind == "mfma":
        k = {4: (6, 8, 8, 3), 8: (10, 12, 12, 7)}[p.passes]
        if c.kind == "mfma":
            if p.dst & c.srcC and not (p.dst == c.srcC and p.op == c.op): n = max(n, k[0])
            if p.dst & c.srcA: n = max(n, k[1])
            if p.dst & c.dst and not (p.dst == c.dst == c.srcC and p.op == c.op): n = max(n, k[0])
        elif c.kind in ("valu", "vmem", "ds"):
            if p.dst & (c.src | c.dst): n = max(n, k[2])
            if c.kind == "valu" and p.srcC & c.dst: n = max(n, k[3])
    if p.kind == "vmem" and getattr(p, "widestore", False):
        if c.kind in ("valu","mfma") and p.sdata & c.dst: n = max(n, 2)
        elif c.kind in ("ds","vmem") and p.sdata & c.dst: n = max(n, 1)
    if p.kind == "salu" and ("s","m0") in p.dst and c.kind == "vmem" and c.lds: n = max(n, 1)
    if p.kind == "salu" and ("s","exec") in p.dst and c.kind == "valu" and (c.dpp or getattr(c,"perm",False) or c.rdlane): n = max(n, 1)
    return n

def fix_hazards(lines):
    out = []
    for ln in lines:
        c = I(ln)
        if c.is_inst and c.kind != "nop":
            dist = 0; req = 0
            for p in reversed(out):
                if not p.is_inst: continue
                if dist >= 20: break
                if p.op in ("s_branch", "s_endpgm"): break
                r = need(p, c)
                if r > dist: req = max(req, r - dist)
                dist += p.ws
            while req > 0:
                k = min(req, 16); out.append(I(f"s_nop {k-1}")); req -= k
        out.append(c)
    return [i.line for i in out]

def inst_sizes(text):
    d = tempfile.mkdtemp()
    open(d + "/a.s", "w").write(text)
    r = subprocess.run(["clang","-x","assembler","-target","amdgcn-amd-amdhsa","-mcpu=gfx950","-c",d+"/a.s","-o",d+"/a.o"], capture_output=True, text=True)
    if r.returncode: raise SystemExit(r.stderr[:3000])
    o = subprocess.run(["llvm-objdump","-d","--mcpu=gfx950",d+"/a.o"], capture_output=True, text=True).stdout
    sz = []
    for l in o.splitlines():
        m = re.search(r"//\s*([0-9A-F]+):\s*((?:[0-9A-F]{8}\s*)+)", l)
        if m: sz.append(4 * len(m.group(2).split()))
    return sz

def add_pads(lines, head, tail, spacing=128):
    sz = inst_sizes(head + "\n".join(lines) + "\n" + tail)
    out = []; k = 0; cur = None; acc = 0; idx = 0
    for ln in lines:
        t = ln.strip()
        if t.startswith(";WARM_BEGIN"):
            cur = t.split()[1]; idx = 0
            out.append(f"WARM_{cur}_0:"); out.append(f"s_cbranch_execz WARM_{cur}_1"); idx = 1; acc = 4; continue
        if t.startswith(";WARM_END"):
            p = t.split(); tgt = p[2] if len(p) > 2 else f"WARM_{cur}_RET"
            out.append(f"WARM_{cur}_{idx}:"); out.append(f"s_cbranch_execz {tgt}"); cur = None; continue
        i = I(ln)
        if i.is_inst:
            s = sz[k]; k += 1
            if cur is not None:
                if acc + s > spacing - 0:
                    out.append(f"WARM_{cur}_{idx}:"); out.append(f"s_cbranch_execz WARM_{cur}_{idx+1}"); idx += 1; acc = 4
                acc += s
        out.append(ln)
    assert k <= len(sz)
    return out

class VM:
    def __init__(s, A): s.q = []; s.A = A
    def issue(s, tag): s.q.append(tag)
    def wait(s, tag):
        idx = max(i for i, t in enumerate(s.q) if t == tag) if tag in s.q else None
        if idx is None: return
        n = len(s.q) - 1 - idx
        s.A(f"s_waitcnt vmcnt({n})"); s.q = s.q[idx + 1:]
    def clear(s): s.q = []
```

```python
import sys, math
from asmlib import *
NAME = "gated_mix__gqa_block_cached__dense_activation_gelu__decode"
HDR = open("cdna_kernels/" + NAME + ".s.ref").read().split("; Override launch geometry")[0]

RING = 0; RSL = 8
HT = 131072
GATH = HT
XB = HT + 16384; GWB = XB + 4096; QB = GWB + 1024
WGT = QB + 1024; GVEC = WGT + 64; HB = WGT + 128
COMB = HB + 512
LDS_BYTES = COMB + 8192
WS_Q = 0x1000; WS_H = 0x20000; WS_ML = 0x30000; WS_O1 = 0x100000; WS_P2 = 0x200000; WS_SIZE = 0x400000
LOG2E = 1.4426950408889634
import struct
def fbits(x): return "0x%08x" % struct.unpack("<I", struct.pack("<f", x))[0]
SPIN = 20000

def gen(stamps=False, wpol="nt", kvpol="nt", warm=True, infl=2, qdelay=0, sleeps=(1,1,8,1,1)):
    L = []
    def A(s):
        for l in s.split("\n"): L.append(l)
    nst = [0]
    def stamp(k):
        if stamps: A(f"s_memrealtime s[{76+2*k}:{77+2*k}]\ns_waitcnt lgkmcnt(0)")
    def srd(d, p, size):
        A(f"s_mov_b32 s{d}, s{p}\ns_mov_b32 s{d+1}, s{p+1}\ns_mov_b32 s{d+2}, {size:#x}\ns_mov_b32 s{d+3}, 0x20000")
    def poll(name, loads, grans, sleep):
        A(f"s_mov_b32 s70, {SPIN}")
        A(f"POLL_{name}:")
        for l in loads: A(l)
        A("s_waitcnt vmcnt(0)")
        for i, g in enumerate(grans):
            if i == 0: A(f"v_cmp_ne_u64 s[72:73], s[44:45], v[{g+2}:{g+3}]")
            else: A(f"v_cmp_ne_u64 vcc, s[44:45], v[{g+2}:{g+3}]\ns_or_b64 s[72:73], s[72:73], vcc")
        A("s_cmp_eq_u64 s[72:73], 0")
        A(f"s_cbranch_scc1 POLL_{name}_OK")
        A("s_sub_u32 s70, s70, 1")
        A(f"s_cbranch_scc1 POLL_{name}_OK")
        if sleep: A(f"s_sleep {sleep}")
        A(f"s_branch POLL_{name}")
        A(f"POLL_{name}_OK:")
    def allred(op, v, t, rows=True):
        if rows:
            A(f"{op}_dpp v{v}, v{v}, v{v} row_ror:4 row_mask:0xf bank_mask:0xf")
            A(f"{op}_dpp v{v}, v{v}, v{v} row_ror:8 row_mask:0xf bank_mask:0xf")
        A(f"v_mov_b32 v{t}, v{v}\nv_permlane16_swap_b32 v{v}, v{t}\n{op} v{v}, v{v}, v{t}")
        A(f"v_mov_b32 v{t}, v{v}\nv_permlane32_swap_b32 v{v}, v{t}\n{op} v{v}, v{v}, v{t}")
    def dump_stamps(first, n, lanev):
        if not stamps: return
        A("s_lshl_b32 s68, s2, 7\ns_add_u32 s68, s68, 0x8000000\ns_add_u32 s34, s34, s68\ns_addc_u32 s35, s35, 0")
        A("s_mov_b64 exec, 1\nv_mov_b32 v1, 0")
        for k in range(n):
            A(f"v_mov_b32 v4, s{76+2*k}\nv_mov_b32 v5, s{77+2*k}\nglobal_store_dwordx2 v1, v[4:5], s[34:35] offset:{(first+k)*8}\ns_nop 1")
        A("s_waitcnt vmcnt(0)")

    stamp(0)
    A("s_cmp_ge_u32 s2, 256\ns_cbranch_scc1 L_END")
    A("s_load_dwordx16 s[8:23], s[0:1], 0\ns_load_dwordx8 s[24:31], s[0:1], 64\ns_load_dwordx4 s[32:35], s[0:1], 96")
    A("v_lshrrev_b32 v1, 6, v0\nv_and_b32 v2, 63, v0")
    A("s_and_b32 s36, s2, 7\ns_lshr_b32 s37, s2, 3")
    A("v_readfirstlane_b32 s3, v1")
    A("s_lshr_b32 s38, s37, 3\ns_and_b32 s39, s37, 7")
    A("v_lshrrev_b32 v3, 4, v2\nv_and_b32 v4, 15, v2")
    A("s_cmp_lg_u32 s3, 0\ns_cbranch_scc1 L_STREAM")

    vWQo, vLin, vT0, vT1, vT2, vT3 = 5, 6, 7, 8, 9, 10
    vXa, vWa, vGa, vB1, vB2, vOMG, vG = 11, 12, 13, 14, 16, 17, 18
    vD = 20; vGr = 24; vX = 32; vW = 96; vP = 160
    A("s_setprio 3")
    A(f"v_lshrrev_b32 v{vT0}, 1, v2\nv_and_b32 v{vT1}, 1, v2\nv_lshlrev_b32 v{vT1}, 4, v{vT1}\nv_lshl_add_u32 v{vWQo}, v{vT0}, 13, v{vT1}")
    A(f"v_lshlrev_b32 v{vLin}, 4, v2")
    A("s_lshl_b32 s68, s36, 10\ns_lshl_b32 s69, s37, 5\ns_add_u32 s68, s68, s69")
    A("s_mov_b32 s54, 0x400000\ns_mov_b32 s55, 0x20000")
    A(f"s_mov_b32 m0, {HT}")
    A("s_waitcnt lgkmcnt(0)")
    A("s_mov_b32 s52, s14\ns_mov_b32 s53, s15")
    for u in range(16):
        A(f"buffer_load_dwordx4 v{vWQo}, s[52:55], s68 offen {wpol} lds")
        if u < 15: A(f"s_add_u32 m0, m0, 1024\ns_add_u32 s68, s68, 0x40000")
    A("s_load_dword s44, s[34:35], 0")
    srd(60, 8, 4096); srd(64, 28, 1024)
    A(f"s_mov_b32 m0, {XB}")
    for u in range(4): A(f"buffer_load_dwordx4 v{vLin}, s[60:63], 0 offen offset:{u*1024} lds")
    A(f"s_mov_b32 m0, {GWB}")
    A(f"buffer_load_dwordx4 v{vLin}, s[64:67], 0 offen lds")
    srd(48, 34, WS_SIZE); srd(56, 20, 512*1792*2)
    A(f"v_and_b32 v{vT0}, 3, v2")
    A(f"v_lshlrev_b32 v{vXa}, 10, v{vT0}\nv_lshl_add_u32 v{vXa}, v3, 4, v{vXa}\nv_add_u32 v{vXa}, {XB}, v{vXa}")
    A(f"v_bfe_u32 v{vT1}, v2, 2, 2\nv_lshl_add_u32 v{vT1}, v3, 3, v{vT1}\nv_lshlrev_b32 v{vT1}, 5, v{vT1}\nv_lshl_add_u32 v{vWa}, v{vT0}, 3, v{vT1}\nv_add_u32 v{vWa}, {HT}, v{vWa}")
    A(f"v_lshlrev_b32 v{vGa}, 4, v3\nv_add_u32 v{vGa}, {GWB}, v{vGa}")
    vQp = 19
    A(f"s_lshl_b32 s68, s36, 11\ns_lshl_b32 s69, s37, 6\ns_add_u32 s68, s68, s69\ns_add_u32 s68, s68, {WS_Q}")
    A(f"v_lshlrev_b32 v{vQp}, 14, v{vT0}\nv_lshl_add_u32 v{vQp}, v3, 4, v{vQp}\nv_add_u32 v{vQp}, s68, v{vQp}")
    A(f"s_lshl_b32 s68, s38, 3\ns_add_u32 s68, s68, s36\ns_lshl_b32 s68, s68, 11\ns_add_u32 s71, s68, {WS_Q}")
    A("s_waitcnt lgkmcnt(0)")
    A("s_add_u32 s44, s44, 1\ns_xor_b32 s45, s44, 0xa5c3e1f7")
    A(f"v_mov_b32 v{vGr+2}, s44\nv_mov_b32 v{vGr+3}, s45")
    if warm:
        A("s_mov_b64 exec, 0\ns_branch WARM_hq_0\nWARM_hq_RET:\ns_mov_b64 exec, -1")
    def gemm(readx, wtr):
        per = (2 if wtr else 1) + (1 if readx else 0)
        dep = 12 // per if per > 1 else 8
        def rd(m):
            if wtr:
                A(f"ds_read_b64_tr_b16 v[{vW+4*m}:{vW+4*m+1}], v{vWa} offset:{m*1024}")
                A(f"ds_read_b64_tr_b16 v[{vW+4*m+2}:{vW+4*m+3}], v{vWa} offset:{m*1024+128}")
            else:
                A(f"ds_read_b128 v[{vW+4*m}:{vW+4*m+3}], v{vGa} offset:{m*64}")
            if readx: A(f"ds_read_b128 v[{vX+4*m}:{vX+4*m+3}], v{vXa} offset:{m*64}")
        for m in range(dep): rd(m)
        for m in range(16):
            left = min(16, m + dep) - m - 1
            A(f"s_waitcnt lgkmcnt({left*per})")
            c = "0" if m == 0 else f"v[{vD}:{vD+3}]"
            A(f"v_mfma_f32_16x16x32_bf16 v[{vD}:{vD+3}], v[{vW+4*m}:{vW+4*m+3}], v[{vX+4*m}:{vX+4*m+3}], {c}")
            if m + dep < 16: rd(m + dep)
    if warm: A(";WARM_BEGIN hq")
    A("s_waitcnt vmcnt(0)")
    stamp(1)
    gemm(True, True)
    A(f"v_cvt_pk_bf16_f32 v{vGr}, v{vD}, v{vD+1}\nv_cvt_pk_bf16_f32 v{vGr+1}, v{vD+2}, v{vD+3}")
    A("s_mov_b32 exec_lo, 0x000f000f\ns_mov_b32 exec_hi, 0x000f000f")
    A(f"buffer_store_dwordx4 v[{vGr}:{vGr+3}], v{vQp}, s[48:51], 0 offen sc1")
    A("s_mov_b64 exec, -1")
    stamp(2)
    gemm(False, False)
    A(f"v_mul_f32 v{vT1}, {fbits(-LOG2E)}, v{vD}\nv_exp_f32 v{vT1}, v{vT1}\nv_add_f32 v{vT1}, 1.0, v{vT1}\nv_rcp_f32 v{vG}, v{vT1}\nv_sub_f32 v{vOMG}, 1.0, v{vG}")
    A(f"v_lshlrev_b32 v{vT1}, 2, v2\nv_add_u32 v{vT1}, {GVEC}, v{vT1}\ns_mov_b64 exec, 15\nds_write_b32 v{vT1}, v{vOMG}\ns_mov_b64 exec, -1")
    A(f"v_lshlrev_b32 v{vT2}, 3, v2\nv_add_u32 v{vT2}, {QB}, v{vT2}")
    if qdelay: A(f"s_sleep {qdelay}")
    poll("q", [f"buffer_load_dwordx4 v[{vP}:{vP+3}], v{vLin}, s[48:51], s71 offen sc1",
               f"buffer_load_dwordx4 v[{vP+4}:{vP+7}], v{vLin}, s[48:51], s71 offen offset:1024 sc1"], [vP, vP+4], sleeps[0])
    A(f"ds_write_b64 v{vT2}, v[{vP}:{vP+1}]\nds_write_b64 v{vT2}, v[{vP+4}:{vP+5}] offset:512")
    A("s_waitcnt lgkmcnt(0)")
    stamp(3)
    A("s_barrier")
    if warm: A(";WARM_END hq")
    A("s_setprio 0")
    A("s_and_b32 s40, s37, 1\ns_lshr_b32 s41, s37, 1\ns_lshl_b32 s42, s36, 4\ns_add_u32 s42, s42, s41")
    A("s_cmp_ge_u32 s2, 112\ns_cbranch_scc1 L_NOH")
    A("s_mul_i32 s74, s36, 14\ns_add_u32 s74, s74, s37")
    A("s_lshl_b32 s68, s74, 5")
    A(f"v_lshrrev_b32 v{vT1}, 1, v2\nv_mul_u32_u24 v{vT1}, 3584, v{vT1}\nv_and_b32 v{vT2}, 1, v2\nv_lshl_add_u32 v{vT1}, v{vT2}, 4, v{vT1}")
    A(f"v_lshlrev_b32 v{vT2}, 3, v3\nv_add_u32 v{vT2}, s68, v{vT2}")
    A(f"global_load_dwordx2 v[{vB1}:{vB1+1}], v{vT2}, s[22:23]")
    A(f"s_mov_b32 m0, {HT}")
    for u in range(16):
        A(f"buffer_load_dwordx4 v{vT1}, s[56:59], s68 offen {wpol} lds")
        if u < 15: A(f"s_add_u32 m0, m0, 1024\ns_add_u32 s68, s68, {32*3584}")
    A(f"v_mul_u32_u24 v{vT1}, {448*16}, v{vT0}\nv_lshl_add_u32 v{vT1}, v3, 4, v{vT1}\ns_lshl_b32 s68, s74, 6\ns_add_u32 s68, s68, {WS_H}\nv_add_u32 v{vQp}, s68, v{vT1}")
    A("s_waitcnt vmcnt(0)")
    gemm(False, True)
    A(f"v_lshlrev_b32 v{vW}, 16, v{vB1}\nv_and_b32 v{vW+1}, 0xffff0000, v{vB1}\nv_lshlrev_b32 v{vW+2}, 16, v{vB1+1}\nv_and_b32 v{vW+3}, 0xffff0000, v{vB1+1}")
    c1 = -2 * math.sqrt(2 / math.pi) * LOG2E; c2 = c1 * 0.044715
    A(f"s_mov_b32 s68, {fbits(c2)}\nv_mov_b32 v{vT1}, {fbits(c1)}")
    for r in range(4): A(f"v_add_f32 v{vW+r}, v{vW+r}, v{vD+r}")
    for r in range(4): A(f"v_mul_f32 v{vW+4+r}, v{vW+r}, v{vW+r}")
    for r in range(4): A(f"v_fma_f32 v{vW+4+r}, v{vW+4+r}, s68, v{vT1}")
    for r in range(4): A(f"v_mul_f32 v{vW+4+r}, v{vW+4+r}, v{vW+r}")
    for r in range(4): A(f"v_exp_f32 v{vW+4+r}, v{vW+4+r}")
    for r in range(4): A(f"v_add_f32 v{vW+4+r}, 1.0, v{vW+4+r}")
    for r in range(4): A(f"v_rcp_f32 v{vW+4+r}, v{vW+4+r}")
    for r in range(4): A(f"v_mul_f32 v{vW+r}, v{vW+r}, v{vW+4+r}")
    A(f"v_cvt_pk_bf16_f32 v{vGr}, v{vW}, v{vW+1}\nv_cvt_pk_bf16_f32 v{vGr+1}, v{vW+2}, v{vW+3}")
    A("s_mov_b32 exec_lo, 0x000f000f\ns_mov_b32 exec_hi, 0x000f000f")
    A(f"buffer_store_dwordx4 v[{vGr}:{vGr+3}], v{vQp}, s[48:51], 0 offen sc1")
    A("s_mov_b64 exec, -1")
    A("L_NOH:")
    A("s_lshr_b32 s4, s2, 6\ns_bfe_u32 s5, s2, 0x10005\ns_and_b32 s6, s2, 31")
    A("s_lshl_b32 s7, s5, 8\ns_lshr_b32 s68, s6, 3\ns_lshl_b32 s68, s68, 6\ns_add_u32 s7, s7, s68\ns_and_b32 s68, s6, 3\ns_lshl_b32 s68, s68, 4\ns_add_u32 s7, s7, s68\ns_bfe_u32 s68, s6, 0x10002\ns_lshl_b32 s68, s68, 1\ns_add_u32 s7, s7, s68")
    A(f"s_lshl_b32 s7, s7, 1\nv_lshlrev_b32 v{vT3}, 3, v{vT0}\nv_add_u32 v{vT3}, s7, v{vT3}")
    A(f"global_load_dword v{vB2}, v{vT3}, s[26:27]")
    A(f"s_lshl_b32 s68, s4, 10\nv_add_u32 v{vT3}, s68, v{vT3}")
    A(f"v_readlane_b32 s75, v{vOMG}, s4\nv_readlane_b32 s43, v{vG}, s38")
    if warm:
        A("s_mov_b64 exec, 0\ns_branch WARM_st_0\nWARM_ht_RET:\ns_mov_b64 exec, -1")
    A(f"s_mul_i32 s68, s42, 14\ns_lshr_b32 s68, s68, 2\ns_lshl_b32 s68, s68, 4\ns_add_u32 s71, s68, {WS_H}")
    A(f"v_mul_u32_u24 v{vT1}, {448*16}, v{vT0}\nv_lshl_add_u32 v{vT1}, v3, 4, v{vT1}")
    poll("h", [f"buffer_load_dwordx4 v[{vP}:{vP+3}], v{vT1}, s[48:51], s71 offen sc1"], [vP], sleeps[1])
    A("s_bitcmp1_b32 s42, 0\ns_cbranch_scc1 L_HODD")
    A(f"s_mov_b64 exec, 0xffff\ns_lshl_b64 exec, exec, 48\nv_mov_b32 v{vP+1}, 0\ns_branch L_HDONE")
    A(f"L_HODD:\ns_mov_b64 exec, 0xffff\nv_mov_b32 v{vP}, 0")
    A("L_HDONE:\ns_mov_b64 exec, -1")
    A(f"v_lshlrev_b32 v{vT1}, 3, v2\nv_add_u32 v{vT1}, {HB}, v{vT1}\nds_write_b64 v{vT1}, v[{vP}:{vP+1}]")
    stamp(4)
    A(f"s_lshl_b32 s68, s36, 2\ns_add_u32 s68, s68, s38\ns_lshl_b32 s68, s68, 11\ns_add_u32 s71, s68, {WS_ML}")
    poll("ml", [f"buffer_load_dwordx4 v[{vP}:{vP+3}], v{vLin}, s[48:51], s71 offen sc1",
                f"buffer_load_dwordx4 v[{vP+4}:{vP+7}], v{vLin}, s[48:51], s71 offen offset:1024 sc1"], [vP, vP+4], sleeps[2])
    A(f"v_max_f32 v{vT1}, v{vP}, v{vP+4}")
    allred("v_max_f32", vT1, vT2)
    A(f"v_sub_f32 v{vP}, v{vP}, v{vT1}\nv_sub_f32 v{vP+4}, v{vP+4}, v{vT1}\nv_exp_f32 v{vP}, v{vP}\nv_exp_f32 v{vP+4}, v{vP+4}")
    A(f"v_mul_f32 v{vT1}, v{vP}, v{vP+1}\nv_fmac_f32 v{vT1}, v{vP+4}, v{vP+5}")
    allred("v_add_f32", vT1, vT2)
    A(f"v_rcp_f32 v{vT1}, v{vT1}\ns_cmp_ge_u32 s39, 4\ns_cselect_b64 vcc, -1, 0\nv_cndmask_b32 v{vP}, v{vP}, v{vP+4}, vcc")
    A(f"v_mul_f32 v{vT1}, s43, v{vT1}\nv_mul_f32 v{vP}, v{vP}, v{vT1}")
    A(f"v_bfe_u32 v{vT1}, v2, 2, 2\nv_lshlrev_b32 v{vT1}, 2, v{vT1}\nv_lshl_add_u32 v{vT1}, v{vT0}, 4, v{vT1}\nv_add_u32 v{vT1}, {WGT}, v{vT1}")
    A("s_and_b32 s68, s39, 3\ns_lshl_b32 s68, s68, 4\ns_mov_b64 exec, 0xffff\ns_lshl_b64 exec, exec, s68")
    A(f"ds_write_b32 v{vT1}, v{vP}\ns_mov_b64 exec, -1")
    A(f"v_lshrrev_b32 v{vT1}, 2, v2\nv_lshlrev_b32 v{vT1}, 13, v{vT1}\nv_lshl_add_u32 v{vT1}, v{vT0}, 4, v{vT1}")
    A(f"s_lshl_b32 s68, s5, 20\ns_lshl_b32 s69, s4, 11\ns_add_u32 s68, s68, s69\ns_lshl_b32 s69, s6, 6\ns_add_u32 s68, s68, s69\ns_add_u32 s56, s68, {WS_P2}")
    for i in range(1, 8): A(f"s_add_u32 s{56+i}, s{56+i-1}, 0x20000")
    A(f"v_lshlrev_b32 v{vW}, 16, v{vB2}\nv_and_b32 v{vW+1}, 0xffff0000, v{vB2}\nv_mul_f32 v{vW}, s75, v{vW}\nv_mul_f32 v{vW+1}, s75, v{vW+1}")
    A("s_waitcnt lgkmcnt(0)")
    stamp(5)
    if warm: A(";WARM_BEGIN ht")
    A("s_barrier")
    A("s_barrier")
    stamp(6)
    poll("p2", [f"buffer_load_dwordx4 v[{vP+4*i}:{vP+4*i+3}], v{vT1}, s[48:51], s{56+i} offen sc1" for i in range(8)], [vP+4*i for i in range(8)], sleeps[4])
    for e in range(2):
        for st in (4, 2, 1):
            for i in range(st): A(f"v_add_f32 v{vP+4*i+e}, v{vP+4*i+e}, v{vP+4*(i+st)+e}")
    for mode in ("row_ror:4", "row_ror:8"):
        for e in range(2): A(f"v_add_f32_dpp v{vP+e}, v{vP+e}, v{vP+e} {mode} row_mask:0xf bank_mask:0xf")
    for sw in ("16", "32"):
        for e in range(2): A(f"v_mov_b32 v{vP+4+e}, v{vP+e}")
        for e in range(2): A(f"v_permlane{sw}_swap_b32 v{vP+e}, v{vP+4+e}")
        for e in range(2): A(f"v_add_f32 v{vP+e}, v{vP+e}, v{vP+4+e}")
    A(f"v_add_f32 v{vP}, v{vP}, v{vW}\nv_add_f32 v{vP+1}, v{vP+1}, v{vW+1}\nv_cvt_pk_bf16_f32 v{vP}, v{vP}, v{vP+1}")
    A(f"s_mov_b64 exec, 15\nglobal_store_dword v{vT3}, v{vP}, s[30:31]")
    A("s_cmp_lg_u32 s2, 0\ns_cbranch_scc1 L_HEND")
    A(f"s_mov_b64 exec, 1\nv_mov_b32 v{vT1}, 0\nbuffer_store_dword v{vGr+2}, v{vT1}, s[48:51], 0 offen")
    A("L_HEND:")
    if stamps: A("s_waitcnt vmcnt(0)")
    stamp(7)
    dump_stamps(0, 8, 2)
    A("s_endpgm")
    if warm: A(";WARM_END ht")

    A("L_STREAM:")
    vKo, vVo, vWo = 5, 9, 11
    vKa, vVa, vWa2 = 12, 16, 24
    vM, vLs, vT, vT2_ = 25, 26, 27, 28
    vG0 = 32
    vQ = 40; vF = 56; vO = 88; vPp = 120; vS = 152
    vm = VM(A)
    A("s_sub_u32 s4, s3, 1")
    for n in range(4):
        A(f"v_add_u32 v{vT}, {4*n}, v3\nv_xor_b32 v{vT}, v{vT}, v4\nv_lshlrev_b32 v{vT}, 4, v{vT}\nv_lshl_add_u32 v{vKo+n}, v3, 8, v{vT}")
    A("s_lshl_b32 s5, s38, 3\ns_add_u32 s5, s5, s36\ns_lshl_b32 s5, s5, 3\ns_add_u32 s5, s5, s39\ns_lshl_b32 s5, s5, 18\ns_lshl_b32 s68, s4, 12\ns_add_u32 s5, s5, s68")
    A("s_lshl_b32 s6, s4, 15")
    A("s_mov_b32 s7, s5")
    A("s_mov_b32 s54, 0x4000000\ns_mov_b32 s55, 0x20000\ns_mov_b32 m0, s6")
    A("s_waitcnt lgkmcnt(0)")
    A("s_mov_b32 s52, s10\ns_mov_b32 s53, s11")
    def issue(tau):
        slot = tau % RSL
        if tau < 32:
            if tau: A(f"s_add_u32 m0, s6, {slot*4096}")
            if tau == 16: A("s_mov_b32 s7, s5")
            elif tau: A("s_add_u32 s7, s7, 16384")
            for u in range(4):
                vo = vKo + u if tau < 16 else vVo + (u & 1)
                sr = "s[52:55]" if tau < 16 else "s[56:59]"
                A(f"buffer_load_dwordx4 v{vo}, {sr}, s7 offen offset:{u*1024} {kvpol} lds"); vm.issue(tau)
        else:
            n = 4 if tau == 32 else 2
            sr = "s[60:63]" if tau == 32 else "s[64:67]"
            so = 46 if tau == 32 else 47
            for u in range(n):
                A(f"s_add_u32 m0, s6, {slot*4096+u*1024}")
                if u: A(f"s_add_u32 s{so}, s{so}, 8192")
                A(f"buffer_load_dwordx4 v{vWo}, {sr}, s{so} offen {kvpol} lds"); vm.issue(tau)
    for t in range(infl): issue(t)
    A("s_load_dword s44, s[34:35], 0")
    srd(56, 12, 0x4000000); srd(60, 16, 0x400000); srd(64, 24, 1792*1024); srd(48, 34, WS_SIZE)
    for n in range(2):
        A(f"v_add_u32 v{vT}, {4*n}, v3\nv_lshlrev_b32 v{vT}, 1, v{vT}\nv_xor_b32 v{vT}, v{vT}, v4\nv_lshlrev_b32 v{vT}, 4, v{vT}\nv_lshl_add_u32 v{vVo+n}, v3, 8, v{vT}")
    A(f"v_lshrrev_b32 v{vT}, 3, v2\nv_and_b32 v{vT2_}, 7, v2\nv_lshlrev_b32 v{vT2_}, 4, v{vT2_}\nv_lshl_add_u32 v{vWo}, v{vT}, 10, v{vT2_}")
    A(f"v_xor_b32 v{vT}, v3, v4\nv_lshlrev_b32 v{vT}, 4, v{vT}")
    for m in range(4):
        A(f"v_xor_b32 v{vT2_}, {64*m}, v{vT}\nv_lshl_add_u32 v{vT2_}, v4, 8, v{vT2_}\nv_add_u32 v{vKa+m}, s6, v{vT2_}")
    A(f"v_lshrrev_b32 v{vT}, 2, v2")
    A(f"v_and_b32 v{vT2_}, 7, v{vT}\nv_lshlrev_b32 v{vT2_}, 1, v{vT2_}\nv_bfe_u32 v{vM}, v2, 1, 1\nv_xor_b32 v{vT2_}, v{vT2_}, v{vM}\nv_lshlrev_b32 v{vT2_}, 4, v{vT2_}")
    A(f"v_and_b32 v{vM}, 1, v2\nv_lshl_add_u32 v{vT2_}, v{vM}, 3, v{vT2_}\nv_lshl_add_u32 v{vT2_}, v{vT}, 8, v{vT2_}")
    for blk in range(8):
        A(f"v_xor_b32 v{vM}, {32*blk}, v{vT2_}\nv_add_u32 v{vVa+blk}, s6, v{vM}")
    A(f"v_and_b32 v{vM}, 3, v2\nv_lshlrev_b32 v{vM}, 3, v{vM}\nv_lshl_add_u32 v{vM}, v{vT}, 7, v{vM}\nv_add_u32 v{vWa2}, s6, v{vM}")
    A("s_and_b32 s40, s37, 1\ns_lshr_b32 s41, s37, 1\ns_lshl_b32 s42, s36, 4\ns_add_u32 s42, s42, s41")
    A("s_lshl_b32 s68, s40, 9\ns_lshl_b32 s69, s4, 7\ns_add_u32 s68, s68, s69")
    A("s_lshl_b32 s46, s42, 15\ns_add_u32 s46, s46, s68")
    A("s_mul_i32 s47, s42, 14\ns_and_b32 s47, s47, -4\ns_lshl_b32 s47, s47, 10\ns_add_u32 s47, s47, s68")
    A(f"s_mov_b32 s43, {fbits(LOG2E / math.sqrt(128))}")
    vQa = vG0 + 4
    A(f"v_and_b32 v{vM}, 3, v2\nv_lshlrev_b32 v{vQa}, 8, v{vM}\nv_lshl_add_u32 v{vQa}, v3, 4, v{vQa}\nv_add_u32 v{vQa}, {QB}, v{vQa}")
    vCw, vCr, vGw, vGrd, vL1, vP2, vLn = 216, 217, 218, 219, 220, 221, 222
    A(f"s_lshl_b32 s68, s4, 11\ns_add_u32 s68, s68, {COMB}\nv_lshlrev_b32 v{vCw}, 9, v{vM}\nv_lshl_add_u32 v{vCw}, v3, 4, v{vCw}\nv_add_u32 v{vCw}, s68, v{vCw}")
    A(f"s_lshl_b32 s68, s4, 9\ns_add_u32 s69, s68, {COMB}\nv_lshlrev_b32 v{vLn}, 3, v2\nv_add_u32 v{vCr}, s69, v{vLn}")
    A(f"s_add_u32 s69, s68, {GATH}\nv_add_u32 v{vGw}, s69, v{vLn}")
    A(f"v_bfe_u32 v{vLs}, v2, 2, 2\nv_lshlrev_b32 v{vGrd}, 9, v{vLs}\nv_lshl_add_u32 v{vGrd}, v{vM}, 7, v{vGrd}\nv_lshl_add_u32 v{vGrd}, v3, 4, v{vGrd}\nv_add_u32 v{vGrd}, {GATH}, v{vGrd}")
    A(f"v_lshlrev_b32 v{vL1}, 15, v3\nv_lshl_add_u32 v{vL1}, v4, 4, v{vL1}")
    A(f"v_lshlrev_b32 v{vP2}, 11, v{vM}\nv_lshl_add_u32 v{vP2}, v{vLs}, 6, v{vP2}\nv_lshl_add_u32 v{vP2}, v3, 4, v{vP2}")
    A(f"v_lshlrev_b32 v{vLn}, 4, v2")
    A("s_lshl_b32 s68, s36, 2\ns_add_u32 s68, s68, s38\ns_lshl_b32 s68, s68, 3\ns_add_u32 s68, s68, s39\ns_lshl_b32 s68, s68, 2\ns_add_u32 s68, s68, s4")
    A(f"s_lshl_b32 s24, s68, 6\ns_add_u32 s24, s24, {WS_ML}\ns_lshl_b32 s25, s68, 10\ns_add_u32 s25, s25, {WS_O1}")
    A(f"s_lshl_b32 s26, s36, 17\ns_lshl_b32 s68, s4, 13\ns_add_u32 s26, s26, s68\ns_lshl_b32 s68, s41, 8\ns_add_u32 s26, s26, s68\ns_add_u32 s26, s26, {WS_O1}\ns_add_u32 s28, s26, 4096")
    A(f"s_lshl_b32 s27, s40, 7\ns_add_u32 s27, s27, s42\ns_lshl_b32 s27, s27, 13\ns_lshl_b32 s68, s4, 9\ns_add_u32 s27, s27, s68\ns_add_u32 s27, s27, {WS_P2}")
    A("s_waitcnt lgkmcnt(0)")
    A("s_add_u32 s44, s44, 1\ns_xor_b32 s45, s44, 0xa5c3e1f7")
    A(f"v_mov_b32 v{vG0+2}, s44\nv_mov_b32 v{vG0+3}, s45\nv_mov_b32 v{vG0+6}, s44\nv_mov_b32 v{vG0+7}, s45")
    A(f"v_mov_b32 v{vM}, 0xff800000\nv_mov_b32 v{vLs}, 0")
    stamp(1)
    for t in range(infl, RSL):
        vm.wait(t - infl); issue(t)
    A("s_barrier")
    stamp(2)
    for m in range(4): A(f"ds_read_b128 v[{vQ+4*m}:{vQ+4*m+3}], v{vQa} offset:{64*m}")
    def kread(i):
        fb = vF + 16 * (i & 1)
        for m in range(4): A(f"ds_read_b128 v[{fb+4*m}:{fb+4*m+3}], v{vKa+m} offset:{(i%RSL)*4096}")
    def kmfma(i):
        fb = vF + 16 * (i & 1); d = vS + 4 * i
        for m in range(4):
            c = "0" if m == 0 else f"v[{d}:{d+3}]"
            A(f"v_mfma_f32_16x16x32_bf16 v[{d}:{d+3}], v[{fb+4*m}:{fb+4*m+3}], v[{vQ+4*m}:{vQ+4*m+3}], {c}")
    def kmax(i):
        d = vS + 4 * i
        A(f"v_max3_f32 v{vM}, v{vM}, v{d}, v{d+1}\nv_max3_f32 v{vM}, v{vM}, v{d+2}, v{d+3}")
    def pchunk(i0, i1):
        for i in range(i0, i1):
            d = vS + 4 * i
            for r in range(4): A(f"v_fma_f32 v{d+r}, v{d+r}, s43, -v{vM}")
            for r in range(4): A(f"v_exp_f32 v{d+r}, v{d+r}")
            p = vPp + 2 * i
            A(f"v_cvt_pk_bf16_f32 v{p}, v{d}, v{d+1}\nv_cvt_pk_bf16_f32 v{p+1}, v{d+2}, v{d+3}")
            A(f"v_add_f32 v{d}, v{d}, v{d+1}\nv_add_f32 v{d+2}, v{d+2}, v{d+3}\nv_add_f32 v{vLs}, v{vLs}, v{d}\nv_add_f32 v{vLs}, v{vLs}, v{d+2}")
    def pv(pi):
        s0 = (16 + 2 * pi) % RSL; s1 = (17 + 2 * pi) % RSL
        def rd(blk):
            A(f"ds_read_b64_tr_b16 v[{vF+4*blk}:{vF+4*blk+1}], v{vVa+blk} offset:{s0*4096}")
            A(f"ds_read_b64_tr_b16 v[{vF+4*blk+2}:{vF+4*blk+3}], v{vVa+blk} offset:{s1*4096}")
        for blk in range(6): rd(blk)
        for blk in range(8):
            left = min(8, blk + 6) - blk - 1
            A(f"s_waitcnt lgkmcnt({2*left})")
            c = "0" if pi == 0 else f"v[{vO+4*blk}:{vO+4*blk+3}]"
            A(f"v_mfma_f32_16x16x32_bf16 v[{vO+4*blk}:{vO+4*blk+3}], v[{vF+4*blk}:{vF+4*blk+3}], v[{vPp+4*pi}:{vPp+4*pi+3}], {c}")
            if blk + 6 < 8: rd(blk + 6)
    kread(0); kread(1)
    A("s_waitcnt lgkmcnt(4)")
    kmfma(0)
    vm.wait(RSL - infl); issue(RSL)
    done = RSL - infl
    for i in range(1, done + 1):
        if i + 1 <= done: kread(i + 1); A("s_waitcnt lgkmcnt(4)")
        else: A("s_waitcnt lgkmcnt(0)")
        kmfma(i); kmax(i - 1)
    nextpv = 0
    for tau in range(RSL + 1, 34):
        t = tau - infl
        vm.wait(t)
        if tau == 33 and warm: A(";WARM_BEGIN st")
        if tau == 33: stamp(4)
        issue(tau)
        if t < 16:
            kread(t); kmax(t - 1); A("s_waitcnt lgkmcnt(0)"); kmfma(t)
            if t == 15:
                kmax(15); allred("v_max_f32", vM, vT, rows=False)
                A(f"v_mul_f32 v{vM}, s43, v{vM}")
                pchunk(0, 4)
        elif t < 19:
            pchunk(4 * (t - 15), 4 * (t - 14))
            if t == 18:
                allred("v_add_f32", vLs, vT, rows=False)
                A(f"v_mov_b32 v{vG0}, v{vM}\nv_mov_b32 v{vG0+1}, v{vLs}\ns_mov_b64 exec, 15")
                A(f"buffer_store_dwordx4 v[{vG0}:{vG0+3}], v{vLn}, s[48:51], s24 offen sc1"); vm.issue("ml")
                A("s_mov_b64 exec, -1")
                stamp(3)
        else:
            while nextpv < 8 and 17 + 2 * nextpv <= t:
                pv(nextpv); nextpv += 1
    for t in range(34 - infl, 32):
        vm.wait(t)
        while nextpv < 8 and 17 + 2 * nextpv <= t:
            pv(nextpv); nextpv += 1
    assert nextpv == 8
    A("s_mov_b32 exec_lo, 0x000f000f\ns_mov_b32 exec_hi, 0x000f000f")
    for blk in range(8): A(f"ds_write_b128 v{vCw}, v[{vO+4*blk}:{vO+4*blk+3}] offset:{64*blk}")
    A("s_mov_b64 exec, -1")
    A(f"s_lshl_b32 s68, s4, 4\ns_add_u32 s68, s68, {WGT}\nv_mov_b32 v{vT}, s68")
    A("s_waitcnt lgkmcnt(0)\ns_barrier")
    A(f"ds_read_b128 v[{vQ}:{vQ+3}], v{vT}")
    for w in range(4): A(f"ds_read_b64 v[{vQ+4+2*w}:{vQ+5+2*w}], v{vCr} offset:{2048*w}")
    A(f"v_lshlrev_b32 v{vT}, 3, v2\nv_add_u32 v{vT}, {HB}, v{vT}\nv_and_b32 v{vT2_}, 3, v2\nv_lshlrev_b32 v{vT2_}, 2, v{vT2_}\nv_add_u32 v{vT2_}, {GVEC}, v{vT2_}")
    A("s_waitcnt lgkmcnt(3)")
    A(f"v_mul_f32 v{vG0}, v{vQ}, v{vQ+4}\nv_mul_f32 v{vG0+1}, v{vQ}, v{vQ+5}")
    for w in range(1, 4):
        A(f"s_waitcnt lgkmcnt({3-w})")
        A(f"v_fmac_f32 v{vG0}, v{vQ+w}, v{vQ+4+2*w}\nv_fmac_f32 v{vG0+1}, v{vQ+w}, v{vQ+5+2*w}")
    A(f"buffer_store_dwordx4 v[{vG0}:{vG0+3}], v{vLn}, s[48:51], s25 offen sc1"); vm.issue("o1")
    stamp(5)
    vH = vQ + 12; vOm = vQ + 14; vW2f = vF; vWof = vF + 16; vD2 = vS
    A(f"ds_read_b64 v[{vH}:{vH+1}], v{vT}\nds_read_b32 v{vOm}, v{vT2_}")
    vm.wait(33)
    so = (32 % RSL) * 4096; s2o = (33 % RSL) * 4096
    for t in range(4): A(f"ds_read_b64_tr_b16 v[{vW2f+2*t}:{vW2f+2*t+1}], v{vWa2} offset:{s2o+32*t}")
    for t in range(4):
        A(f"ds_read_b64_tr_b16 v[{vWof+4*t}:{vWof+4*t+1}], v{vWa2} offset:{so+32*t}")
        A(f"ds_read_b64_tr_b16 v[{vWof+4*t+2}:{vWof+4*t+3}], v{vWa2} offset:{so+32*t+2048}")
    A("s_waitcnt lgkmcnt(8)")
    for t in range(4): A(f"v_mfma_f32_16x16x16_bf16 v[{vD2+4*t}:{vD2+4*t+3}], v[{vW2f+2*t}:{vW2f+2*t+1}], v[{vH}:{vH+1}], 0")
    for r in range(16): A(f"v_mul_f32 v{vD2+r}, v{vD2+r}, v{vOm}")
    vR = vS + 16
    poll("o1", [f"buffer_load_dwordx4 v[{vR}:{vR+3}], v{vL1}, s[48:51], s26 offen sc1",
                f"buffer_load_dwordx4 v[{vR+4}:{vR+7}], v{vL1}, s[48:51], s28 offen sc1"], [vR, vR+4], sleeps[3])
    A(f"v_add_f32 v{vR}, v{vR}, v{vR+4}\nv_add_f32 v{vR+1}, v{vR+1}, v{vR+5}")
    A(f"ds_write_b64 v{vGw}, v[{vR}:{vR+1}]")
    A("s_waitcnt lgkmcnt(0)\ns_barrier")
    stamp(6)
    vB = vR + 8
    A(f"ds_read_b128 v[{vB}:{vB+3}], v{vGrd}\nds_read_b128 v[{vB+4}:{vB+7}], v{vGrd} offset:64")
    A("s_waitcnt lgkmcnt(0)")
    for mode in ("row_ror:4", "row_ror:8"):
        for e in range(8): A(f"v_add_f32_dpp v{vB+e}, v{vB+e}, v{vB+e} {mode} row_mask:0xf bank_mask:0xf")
    for e in range(4): A(f"v_cvt_pk_bf16_f32 v{vB+8+e}, v{vB+2*e}, v{vB+2*e+1}")
    for t in range(4):
        A(f"v_mfma_f32_16x16x32_bf16 v[{vD2+4*t}:{vD2+4*t+3}], v[{vWof+4*t}:{vWof+4*t+3}], v[{vB+8}:{vB+11}], v[{vD2+4*t}:{vD2+4*t+3}]")
    for t in range(4):
        for r in range(4):
            dst = vG0 + (r >> 1) * 4 + (r & 1)
            A(f"v_mov_b32_dpp v{dst}, v{vD2+4*t+r} quad_perm:[0,1,2,3] row_mask:0xf bank_mask:{1<<t:#x}")
    A(f"buffer_store_dwordx4 v[{vG0}:{vG0+3}], v{vP2}, s[48:51], s27 offen sc1")
    A(f"buffer_store_dwordx4 v[{vG0+4}:{vG0+7}], v{vP2}, s[48:51], s27 offen offset:256 sc1")
    stamp(7)
    if stamps:
        A("s_cmp_lg_u32 s4, 0\ns_cbranch_scc1 L_END")
        dump_stamps(8, 8, 2)
    A("s_endpgm")
    if warm: A(";WARM_END st WARM_ht_0")
    A("L_END:\ns_endpgm")

    head = HDR + f"; @launch grid=(256,1,1) block=(320,1,1) lds={LDS_BYTES}\n" + \
        f'.amdgcn_target "amdgcn-amd-amdhsa--gfx950"\n.text\n.globl {NAME}_kernel\n.p2align 8\n.type {NAME}_kernel,@function\n{NAME}_kernel:\n'
    tail = f""".section .rodata,"a"
.p2align 6
.amdhsa_kernel {NAME}_kernel
  .amdhsa_next_free_vgpr 224
  .amdhsa_next_free_sgpr 96
  .amdhsa_accum_offset 224
  .amdhsa_group_segment_fixed_size 0
  .amdhsa_kernarg_size 112
  .amdhsa_user_sgpr_count 2
  .amdhsa_user_sgpr_kernarg_segment_ptr 1
  .amdhsa_system_sgpr_workgroup_id_x 1
.end_amdhsa_kernel
"""
    L2 = fix_hazards(L)
    if warm:
        tmp = [l for l in L2]
        stub = "\n".join(f"WARM_{n}_0:" for n in ("hq", "st", "ht")) + "\n"
        L2 = add_pads(L2, head + stub, tail)
    return head + "\n".join(L2) + "\n" + tail

if __name__ == "__main__":
    kw = {}
    out = sys.argv[1]
    for a in sys.argv[2:]:
        k, v = a.split("=")
        kw[k] = eval(v)
    open(out, "w").write(gen(**kw))
```

```python
import sys, math
from asmlib import *
NAME = "gated_mix__gqa_block_cached__dense_activation_gelu__decode"
HDR = open("cdna_kernels/" + NAME + ".s.ref").read().split("; Override launch geometry")[0]

RING = 0; RSL = 8
HT = 131072
GATH = HT
XB = HT + 16384; GWB = XB + 4096; QB = GWB + 1024
WGT = QB + 1024; GVEC = WGT + 64; HB = WGT + 128
COMB = HB + 512
LDS_BYTES = COMB + 8192
WS_Q = 0x1000; WS_H = 0x20000; WS_ML = 0x30000; WS_O1 = 0x100000; WS_P2 = 0x200000; WS_SIZE = 0x400000
LOG2E = 1.4426950408889634
import struct
def fbits(x): return "0x%08x" % struct.unpack("<I", struct.pack("<f", x))[0]
SPIN = 20000

def gen(dbg=False, stamps=False, wpol="nt", kvpol="nt", warm=True, infl=2, qdelay=0, sleeps=(1,1,8,1,1)):
    L = []
    def A(s):
        for l in s.split("\n"): L.append(l)
    nst = [0]
    def stamp(k):
        if stamps: A(f"s_memrealtime s[{76+2*k}:{77+2*k}]\ns_waitcnt lgkmcnt(0)")
    def srd(d, p, size):
        A(f"s_mov_b32 s{d}, s{p}\ns_mov_b32 s{d+1}, s{p+1}\ns_mov_b32 s{d+2}, {size:#x}\ns_mov_b32 s{d+3}, 0x20000")
    def poll(name, loads, grans, sleep):
        A(f"s_mov_b32 s70, {SPIN}")
        A(f"POLL_{name}:")
        for l in loads: A(l)
        A("s_waitcnt vmcnt(0)")
        for i, g in enumerate(grans):
            if i == 0: A(f"v_cmp_ne_u64 s[72:73], s[44:45], v[{g+2}:{g+3}]")
            else: A(f"v_cmp_ne_u64 vcc, s[44:45], v[{g+2}:{g+3}]\ns_or_b64 s[72:73], s[72:73], vcc")
        A("s_cmp_eq_u64 s[72:73], 0")
        A(f"s_cbranch_scc1 POLL_{name}_OK")
        A("s_sub_u32 s70, s70, 1")
        A(f"s_cbranch_scc1 POLL_{name}_OK")
        if sleep: A(f"s_sleep {sleep}")
        A(f"s_branch POLL_{name}")
        A(f"POLL_{name}_OK:")
    def allred(op, v, t, rows=True):
        if rows:
            A(f"{op}_dpp v{v}, v{v}, v{v} row_ror:4 row_mask:0xf bank_mask:0xf")
            A(f"{op}_dpp v{v}, v{v}, v{v} row_ror:8 row_mask:0xf bank_mask:0xf")
        A(f"v_mov_b32 v{t}, v{v}\nv_permlane16_swap_b32 v{v}, v{t}\n{op} v{v}, v{v}, v{t}")
        A(f"v_mov_b32 v{t}, v{v}\nv_permlane32_swap_b32 v{v}, v{t}\n{op} v{v}, v{v}, v{t}")
    def dump_stamps(first, n, lanev):
        if not stamps: return
        if dbg:
            A("s_mov_b64 exec, 1\nv_mov_b32 v1, 0")
            for k in range(n):
                if k == 0: A(f"s_not_b32 s68, s76\nv_mov_b32 v4, s68")
                else: A(f"v_mov_b32 v4, s{76+2*k}")
                A(f"global_atomic_umax v1, v4, s[32:33] offset:{(first+k)*4} sc1\ns_nop 1")
            A("s_waitcnt vmcnt(0)")
            return
        A("s_lshl_b32 s68, s2, 7\ns_add_u32 s68, s68, 0x8000000\ns_add_u32 s34, s34, s68\ns_addc_u32 s35, s35, 0")
        A("s_mov_b64 exec, 1\nv_mov_b32 v1, 0")
        for k in range(n):
            A(f"v_mov_b32 v4, s{76+2*k}\nv_mov_b32 v5, s{77+2*k}\nglobal_store_dwordx2 v1, v[4:5], s[34:35] offset:{(first+k)*8}\ns_nop 1")
        A("s_waitcnt vmcnt(0)")

    stamp(0)
    A("s_cmp_ge_u32 s2, 256\ns_cbranch_scc1 L_END")
    A("s_load_dwordx16 s[8:23], s[0:1], 0\ns_load_dwordx8 s[24:31], s[0:1], 64\ns_load_dwordx4 s[32:35], s[0:1], 96")
    A("v_lshrrev_b32 v1, 6, v0\nv_and_b32 v2, 63, v0")
    A("s_and_b32 s36, s2, 7\ns_lshr_b32 s37, s2, 3")
    A("v_readfirstlane_b32 s3, v1")
    A("s_lshr_b32 s38, s37, 3\ns_and_b32 s39, s37, 7")
    A("v_lshrrev_b32 v3, 4, v2\nv_and_b32 v4, 15, v2")
    A("s_cmp_lg_u32 s3, 0\ns_cbranch_scc1 L_STREAM")

    vWQo, vLin, vT0, vT1, vT2, vT3 = 5, 6, 7, 8, 9, 10
    vXa, vWa, vGa, vB1, vB2, vOMG, vG = 11, 12, 13, 14, 16, 17, 18
    vD = 20; vGr = 24; vX = 32; vW = 96; vP = 160
    A("s_setprio 3")
    A(f"v_lshrrev_b32 v{vT0}, 1, v2\nv_and_b32 v{vT1}, 1, v2\nv_lshlrev_b32 v{vT1}, 4, v{vT1}\nv_lshl_add_u32 v{vWQo}, v{vT0}, 13, v{vT1}")
    A(f"v_lshlrev_b32 v{vLin}, 4, v2")
    A("s_lshl_b32 s68, s36, 10\ns_lshl_b32 s69, s37, 5\ns_add_u32 s68, s68, s69")
    A("s_mov_b32 s54, 0x400000\ns_mov_b32 s55, 0x20000")
    A(f"s_mov_b32 m0, {HT}")
    A("s_waitcnt lgkmcnt(0)")
    A("s_mov_b32 s52, s14\ns_mov_b32 s53, s15")
    for u in range(16):
        A(f"buffer_load_dwordx4 v{vWQo}, s[52:55], s68 offen {wpol} lds")
        if u < 15: A(f"s_add_u32 m0, m0, 1024\ns_add_u32 s68, s68, 0x40000")
    A("s_load_dword s44, s[34:35], 0")
    srd(60, 8, 4096); srd(64, 28, 1024)
    A(f"s_mov_b32 m0, {XB}")
    for u in range(4): A(f"buffer_load_dwordx4 v{vLin}, s[60:63], 0 offen offset:{u*1024} lds")
    A(f"s_mov_b32 m0, {GWB}")
    A(f"buffer_load_dwordx4 v{vLin}, s[64:67], 0 offen lds")
    srd(48, 34, WS_SIZE); srd(56, 20, 512*1792*2)
    A(f"v_and_b32 v{vT0}, 3, v2")
    A(f"v_lshlrev_b32 v{vXa}, 10, v{vT0}\nv_lshl_add_u32 v{vXa}, v3, 4, v{vXa}\nv_add_u32 v{vXa}, {XB}, v{vXa}")
    A(f"v_bfe_u32 v{vT1}, v2, 2, 2\nv_lshl_add_u32 v{vT1}, v3, 3, v{vT1}\nv_lshlrev_b32 v{vT1}, 5, v{vT1}\nv_lshl_add_u32 v{vWa}, v{vT0}, 3, v{vT1}\nv_add_u32 v{vWa}, {HT}, v{vWa}")
    A(f"v_lshlrev_b32 v{vGa}, 4, v3\nv_add_u32 v{vGa}, {GWB}, v{vGa}")
    vQp = 19
    A(f"s_lshl_b32 s68, s36, 11\ns_lshl_b32 s69, s37, 6\ns_add_u32 s68, s68, s69\ns_add_u32 s68, s68, {WS_Q}")
    A(f"v_lshlrev_b32 v{vQp}, 14, v{vT0}\nv_lshl_add_u32 v{vQp}, v3, 4, v{vQp}\nv_add_u32 v{vQp}, s68, v{vQp}")
    A(f"s_lshl_b32 s68, s38, 3\ns_add_u32 s68, s68, s36\ns_lshl_b32 s68, s68, 11\ns_add_u32 s71, s68, {WS_Q}")
    A("s_waitcnt lgkmcnt(0)")
    A("s_add_u32 s44, s44, 1\ns_xor_b32 s45, s44, 0xa5c3e1f7")
    A(f"v_mov_b32 v{vGr+2}, s44\nv_mov_b32 v{vGr+3}, s45")
    if warm:
        A("s_mov_b64 exec, 0\ns_branch WARM_hq_0\nWARM_hq_RET:\ns_mov_b64 exec, -1")
    def gemm(readx, wtr):
        per = (2 if wtr else 1) + (1 if readx else 0)
        dep = 12 // per if per > 1 else 8
        def rd(m):
            if wtr:
                A(f"ds_read_b64_tr_b16 v[{vW+4*m}:{vW+4*m+1}], v{vWa} offset:{m*1024}")
                A(f"ds_read_b64_tr_b16 v[{vW+4*m+2}:{vW+4*m+3}], v{vWa} offset:{m*1024+128}")
            else:
                A(f"ds_read_b128 v[{vW+4*m}:{vW+4*m+3}], v{vGa} offset:{m*64}")
            if readx: A(f"ds_read_b128 v[{vX+4*m}:{vX+4*m+3}], v{vXa} offset:{m*64}")
        for m in range(dep): rd(m)
        for m in range(16):
            left = min(16, m + dep) - m - 1
            A(f"s_waitcnt lgkmcnt({left*per})")
            c = "0" if m == 0 else f"v[{vD}:{vD+3}]"
            A(f"v_mfma_f32_16x16x32_bf16 v[{vD}:{vD+3}], v[{vW+4*m}:{vW+4*m+3}], v[{vX+4*m}:{vX+4*m+3}], {c}")
            if m + dep < 16: rd(m + dep)
    if warm: A(";WARM_BEGIN hq")
    A("s_waitcnt vmcnt(0)")
    stamp(1)
    gemm(True, True)
    A(f"v_cvt_pk_bf16_f32 v{vGr}, v{vD}, v{vD+1}\nv_cvt_pk_bf16_f32 v{vGr+1}, v{vD+2}, v{vD+3}")
    A("s_mov_b32 exec_lo, 0x000f000f\ns_mov_b32 exec_hi, 0x000f000f")
    A(f"buffer_store_dwordx4 v[{vGr}:{vGr+3}], v{vQp}, s[48:51], 0 offen sc1")
    A("s_mov_b64 exec, -1")
    stamp(2)
    gemm(False, False)
    A(f"v_mul_f32 v{vT1}, {fbits(-LOG2E)}, v{vD}\nv_exp_f32 v{vT1}, v{vT1}\nv_add_f32 v{vT1}, 1.0, v{vT1}\nv_rcp_f32 v{vG}, v{vT1}\nv_sub_f32 v{vOMG}, 1.0, v{vG}")
    A(f"v_lshlrev_b32 v{vT1}, 2, v2\nv_add_u32 v{vT1}, {GVEC}, v{vT1}\ns_mov_b64 exec, 15\nds_write_b32 v{vT1}, v{vOMG}\ns_mov_b64 exec, -1")
    A(f"v_lshlrev_b32 v{vT2}, 3, v2\nv_add_u32 v{vT2}, {QB}, v{vT2}")
    if qdelay: A(f"s_sleep {qdelay}")
    poll("q", [f"buffer_load_dwordx4 v[{vP}:{vP+3}], v{vLin}, s[48:51], s71 offen sc1",
               f"buffer_load_dwordx4 v[{vP+4}:{vP+7}], v{vLin}, s[48:51], s71 offen offset:1024 sc1"], [vP, vP+4], sleeps[0])
    A(f"ds_write_b64 v{vT2}, v[{vP}:{vP+1}]\nds_write_b64 v{vT2}, v[{vP+4}:{vP+5}] offset:512")
    A("s_waitcnt lgkmcnt(0)")
    stamp(3)
    A("s_barrier")
    if warm: A(";WARM_END hq")
    A("s_setprio 0")
    A("s_and_b32 s40, s37, 1\ns_lshr_b32 s41, s37, 1\ns_lshl_b32 s42, s36, 4\ns_add_u32 s42, s42, s41")
    A("s_cmp_ge_u32 s2, 112\ns_cbranch_scc1 L_NOH")
    A("s_mul_i32 s74, s36, 14\ns_add_u32 s74, s74, s37")
    A("s_lshl_b32 s68, s74, 5")
    A(f"v_lshrrev_b32 v{vT1}, 1, v2\nv_mul_u32_u24 v{vT1}, 3584, v{vT1}\nv_and_b32 v{vT2}, 1, v2\nv_lshl_add_u32 v{vT1}, v{vT2}, 4, v{vT1}")
    A(f"v_lshlrev_b32 v{vT2}, 3, v3\nv_add_u32 v{vT2}, s68, v{vT2}")
    A(f"global_load_dwordx2 v[{vB1}:{vB1+1}], v{vT2}, s[22:23]")
    A(f"s_mov_b32 m0, {HT}")
    for u in range(16):
        A(f"buffer_load_dwordx4 v{vT1}, s[56:59], s68 offen {wpol} lds")
        if u < 15: A(f"s_add_u32 m0, m0, 1024\ns_add_u32 s68, s68, {32*3584}")
    A(f"v_mul_u32_u24 v{vT1}, {448*16}, v{vT0}\nv_lshl_add_u32 v{vT1}, v3, 4, v{vT1}\ns_lshl_b32 s68, s74, 6\ns_add_u32 s68, s68, {WS_H}\nv_add_u32 v{vQp}, s68, v{vT1}")
    A("s_waitcnt vmcnt(0)")
    gemm(False, True)
    A(f"v_lshlrev_b32 v{vW}, 16, v{vB1}\nv_and_b32 v{vW+1}, 0xffff0000, v{vB1}\nv_lshlrev_b32 v{vW+2}, 16, v{vB1+1}\nv_and_b32 v{vW+3}, 0xffff0000, v{vB1+1}")
    c1 = -2 * math.sqrt(2 / math.pi) * LOG2E; c2 = c1 * 0.044715
    A(f"s_mov_b32 s68, {fbits(c2)}\nv_mov_b32 v{vT1}, {fbits(c1)}")
    for r in range(4): A(f"v_add_f32 v{vW+r}, v{vW+r}, v{vD+r}")
    for r in range(4): A(f"v_mul_f32 v{vW+4+r}, v{vW+r}, v{vW+r}")
    for r in range(4): A(f"v_fma_f32 v{vW+4+r}, v{vW+4+r}, s68, v{vT1}")
    for r in range(4): A(f"v_mul_f32 v{vW+4+r}, v{vW+4+r}, v{vW+r}")
    for r in range(4): A(f"v_exp_f32 v{vW+4+r}, v{vW+4+r}")
    for r in range(4): A(f"v_add_f32 v{vW+4+r}, 1.0, v{vW+4+r}")
    for r in range(4): A(f"v_rcp_f32 v{vW+4+r}, v{vW+4+r}")
    for r in range(4): A(f"v_mul_f32 v{vW+r}, v{vW+r}, v{vW+4+r}")
    A(f"v_cvt_pk_bf16_f32 v{vGr}, v{vW}, v{vW+1}\nv_cvt_pk_bf16_f32 v{vGr+1}, v{vW+2}, v{vW+3}")
    A("s_mov_b32 exec_lo, 0x000f000f\ns_mov_b32 exec_hi, 0x000f000f")
    A(f"buffer_store_dwordx4 v[{vGr}:{vGr+3}], v{vQp}, s[48:51], 0 offen sc1")
    A("s_mov_b64 exec, -1")
    A("L_NOH:")
    A("s_lshr_b32 s4, s2, 6\ns_bfe_u32 s5, s2, 0x10005\ns_and_b32 s6, s2, 31")
    A("s_lshl_b32 s7, s5, 8\ns_lshr_b32 s68, s6, 3\ns_lshl_b32 s68, s68, 6\ns_add_u32 s7, s7, s68\ns_and_b32 s68, s6, 3\ns_lshl_b32 s68, s68, 4\ns_add_u32 s7, s7, s68\ns_bfe_u32 s68, s6, 0x10002\ns_lshl_b32 s68, s68, 1\ns_add_u32 s7, s7, s68")
    A(f"s_lshl_b32 s7, s7, 1\nv_lshlrev_b32 v{vT3}, 3, v{vT0}\nv_add_u32 v{vT3}, s7, v{vT3}")
    A(f"global_load_dword v{vB2}, v{vT3}, s[26:27]")
    A(f"s_lshl_b32 s68, s4, 10\nv_add_u32 v{vT3}, s68, v{vT3}")
    A(f"v_readlane_b32 s75, v{vOMG}, s4\nv_readlane_b32 s43, v{vG}, s38")
    if warm:
        A("s_mov_b64 exec, 0\ns_branch WARM_st_0\nWARM_ht_RET:\ns_mov_b64 exec, -1")
    A(f"s_mul_i32 s68, s42, 14\ns_lshr_b32 s68, s68, 2\ns_lshl_b32 s68, s68, 4\ns_add_u32 s71, s68, {WS_H}")
    A(f"v_mul_u32_u24 v{vT1}, {448*16}, v{vT0}\nv_lshl_add_u32 v{vT1}, v3, 4, v{vT1}")
    poll("h", [f"buffer_load_dwordx4 v[{vP}:{vP+3}], v{vT1}, s[48:51], s71 offen sc1"], [vP], sleeps[1])
    A("s_bitcmp1_b32 s42, 0\ns_cbranch_scc1 L_HODD")
    A(f"s_mov_b64 exec, 0xffff\ns_lshl_b64 exec, exec, 48\nv_mov_b32 v{vP+1}, 0\ns_branch L_HDONE")
    A(f"L_HODD:\ns_mov_b64 exec, 0xffff\nv_mov_b32 v{vP}, 0")
    A("L_HDONE:\ns_mov_b64 exec, -1")
    A(f"v_lshlrev_b32 v{vT1}, 3, v2\nv_add_u32 v{vT1}, {HB}, v{vT1}\nds_write_b64 v{vT1}, v[{vP}:{vP+1}]")
    stamp(4)
    A(f"s_lshl_b32 s68, s36, 2\ns_add_u32 s68, s68, s38\ns_lshl_b32 s68, s68, 11\ns_add_u32 s71, s68, {WS_ML}")
    poll("ml", [f"buffer_load_dwordx4 v[{vP}:{vP+3}], v{vLin}, s[48:51], s71 offen sc1",
                f"buffer_load_dwordx4 v[{vP+4}:{vP+7}], v{vLin}, s[48:51], s71 offen offset:1024 sc1"], [vP, vP+4], sleeps[2])
    A(f"v_max_f32 v{vT1}, v{vP}, v{vP+4}")
    allred("v_max_f32", vT1, vT2)
    A(f"v_sub_f32 v{vP}, v{vP}, v{vT1}\nv_sub_f32 v{vP+4}, v{vP+4}, v{vT1}\nv_exp_f32 v{vP}, v{vP}\nv_exp_f32 v{vP+4}, v{vP+4}")
    A(f"v_mul_f32 v{vT1}, v{vP}, v{vP+1}\nv_fmac_f32 v{vT1}, v{vP+4}, v{vP+5}")
    allred("v_add_f32", vT1, vT2)
    A(f"v_rcp_f32 v{vT1}, v{vT1}\ns_cmp_ge_u32 s39, 4\ns_cselect_b64 vcc, -1, 0\nv_cndmask_b32 v{vP}, v{vP}, v{vP+4}, vcc")
    A(f"v_mul_f32 v{vT1}, s43, v{vT1}\nv_mul_f32 v{vP}, v{vP}, v{vT1}")
    A(f"v_bfe_u32 v{vT1}, v2, 2, 2\nv_lshlrev_b32 v{vT1}, 2, v{vT1}\nv_lshl_add_u32 v{vT1}, v{vT0}, 4, v{vT1}\nv_add_u32 v{vT1}, {WGT}, v{vT1}")
    A("s_and_b32 s68, s39, 3\ns_lshl_b32 s68, s68, 4\ns_mov_b64 exec, 0xffff\ns_lshl_b64 exec, exec, s68")
    A(f"ds_write_b32 v{vT1}, v{vP}\ns_mov_b64 exec, -1")
    A(f"v_lshrrev_b32 v{vT1}, 2, v2\nv_lshlrev_b32 v{vT1}, 13, v{vT1}\nv_lshl_add_u32 v{vT1}, v{vT0}, 4, v{vT1}")
    A(f"s_lshl_b32 s68, s5, 20\ns_lshl_b32 s69, s4, 11\ns_add_u32 s68, s68, s69\ns_lshl_b32 s69, s6, 6\ns_add_u32 s68, s68, s69\ns_add_u32 s56, s68, {WS_P2}")
    for i in range(1, 8): A(f"s_add_u32 s{56+i}, s{56+i-1}, 0x20000")
    A(f"v_lshlrev_b32 v{vW}, 16, v{vB2}\nv_and_b32 v{vW+1}, 0xffff0000, v{vB2}\nv_mul_f32 v{vW}, s75, v{vW}\nv_mul_f32 v{vW+1}, s75, v{vW+1}")
    A("s_waitcnt lgkmcnt(0)")
    stamp(5)
    if warm: A(";WARM_BEGIN ht")
    A("s_barrier")
    A("s_barrier")
    stamp(6)
    poll("p2", [f"buffer_load_dwordx4 v[{vP+4*i}:{vP+4*i+3}], v{vT1}, s[48:51], s{56+i} offen sc1" for i in range(8)], [vP+4*i for i in range(8)], sleeps[4])
    for e in range(2):
        for st in (4, 2, 1):
            for i in range(st): A(f"v_add_f32 v{vP+4*i+e}, v{vP+4*i+e}, v{vP+4*(i+st)+e}")
    for mode in ("row_ror:4", "row_ror:8"):
        for e in range(2): A(f"v_add_f32_dpp v{vP+e}, v{vP+e}, v{vP+e} {mode} row_mask:0xf bank_mask:0xf")
    for sw in ("16", "32"):
        for e in range(2): A(f"v_mov_b32 v{vP+4+e}, v{vP+e}")
        for e in range(2): A(f"v_permlane{sw}_swap_b32 v{vP+e}, v{vP+4+e}")
        for e in range(2): A(f"v_add_f32 v{vP+e}, v{vP+e}, v{vP+4+e}")
    A(f"v_add_f32 v{vP}, v{vP}, v{vW}\nv_add_f32 v{vP+1}, v{vP+1}, v{vW+1}\nv_cvt_pk_bf16_f32 v{vP}, v{vP}, v{vP+1}")
    A(f"s_mov_b64 exec, 15\nglobal_store_dword v{vT3}, v{vP}, s[30:31]")
    A("s_cmp_lg_u32 s2, 0\ns_cbranch_scc1 L_HEND")
    A(f"s_mov_b64 exec, 1\nv_mov_b32 v{vT1}, 0\nbuffer_store_dword v{vGr+2}, v{vT1}, s[48:51], 0 offen")
    A("L_HEND:")
    if stamps: A("s_waitcnt vmcnt(0)")
    stamp(7)
    dump_stamps(0, 8, 2)
    A("s_endpgm")
    if warm: A(";WARM_END ht")

    A("L_STREAM:")
    vKo, vVo, vWo = 5, 9, 11
    vKa, vVa, vWa2 = 12, 16, 24
    vM, vLs, vT, vT2_ = 25, 26, 27, 28
    vG0 = 32
    vQ = 40; vF = 56; vO = 88; vPp = 120; vS = 152
    vm = VM(A)
    A("s_sub_u32 s4, s3, 1")
    for n in range(4):
        A(f"v_add_u32 v{vT}, {4*n}, v3\nv_xor_b32 v{vT}, v{vT}, v4\nv_lshlrev_b32 v{vT}, 4, v{vT}\nv_lshl_add_u32 v{vKo+n}, v3, 8, v{vT}")
    A("s_lshl_b32 s5, s38, 3\ns_add_u32 s5, s5, s36\ns_lshl_b32 s5, s5, 3\ns_add_u32 s5, s5, s39\ns_lshl_b32 s5, s5, 18\ns_lshl_b32 s68, s4, 12\ns_add_u32 s5, s5, s68")
    A("s_lshl_b32 s6, s4, 15")
    A("s_mov_b32 s7, s5")
    A("s_mov_b32 s54, 0x4000000\ns_mov_b32 s55, 0x20000\ns_mov_b32 m0, s6")
    A("s_waitcnt lgkmcnt(0)")
    A("s_mov_b32 s52, s10\ns_mov_b32 s53, s11")
    def issue(tau):
        slot = tau % RSL
        if tau < 32:
            if tau: A(f"s_add_u32 m0, s6, {slot*4096}")
            if tau == 16: A("s_mov_b32 s7, s5")
            elif tau: A("s_add_u32 s7, s7, 16384")
            for u in range(4):
                vo = vKo + u if tau < 16 else vVo + (u & 1)
                sr = "s[52:55]" if tau < 16 else "s[56:59]"
                A(f"buffer_load_dwordx4 v{vo}, {sr}, s7 offen offset:{u*1024} {kvpol} lds"); vm.issue(tau)
        else:
            n = 4 if tau == 32 else 2
            sr = "s[60:63]" if tau == 32 else "s[64:67]"
            so = 46 if tau == 32 else 47
            for u in range(n):
                A(f"s_add_u32 m0, s6, {slot*4096+u*1024}")
                if u: A(f"s_add_u32 s{so}, s{so}, 8192")
                A(f"buffer_load_dwordx4 v{vWo}, {sr}, s{so} offen {kvpol} lds"); vm.issue(tau)
    for t in range(infl): issue(t)
    A("s_load_dword s44, s[34:35], 0")
    srd(56, 12, 0x4000000); srd(60, 16, 0x400000); srd(64, 24, 1792*1024); srd(48, 34, WS_SIZE)
    for n in range(2):
        A(f"v_add_u32 v{vT}, {4*n}, v3\nv_lshlrev_b32 v{vT}, 1, v{vT}\nv_xor_b32 v{vT}, v{vT}, v4\nv_lshlrev_b32 v{vT}, 4, v{vT}\nv_lshl_add_u32 v{vVo+n}, v3, 8, v{vT}")
    A(f"v_lshrrev_b32 v{vT}, 3, v2\nv_and_b32 v{vT2_}, 7, v2\nv_lshlrev_b32 v{vT2_}, 4, v{vT2_}\nv_lshl_add_u32 v{vWo}, v{vT}, 10, v{vT2_}")
    A(f"v_xor_b32 v{vT}, v3, v4\nv_lshlrev_b32 v{vT}, 4, v{vT}")
    for m in range(4):
        A(f"v_xor_b32 v{vT2_}, {64*m}, v{vT}\nv_lshl_add_u32 v{vT2_}, v4, 8, v{vT2_}\nv_add_u32 v{vKa+m}, s6, v{vT2_}")
    A(f"v_lshrrev_b32 v{vT}, 2, v2")
    A(f"v_and_b32 v{vT2_}, 7, v{vT}\nv_lshlrev_b32 v{vT2_}, 1, v{vT2_}\nv_bfe_u32 v{vM}, v2, 1, 1\nv_xor_b32 v{vT2_}, v{vT2_}, v{vM}\nv_lshlrev_b32 v{vT2_}, 4, v{vT2_}")
    A(f"v_and_b32 v{vM}, 1, v2\nv_lshl_add_u32 v{vT2_}, v{vM}, 3, v{vT2_}\nv_lshl_add_u32 v{vT2_}, v{vT}, 8, v{vT2_}")
    for blk in range(8):
        A(f"v_xor_b32 v{vM}, {32*blk}, v{vT2_}\nv_add_u32 v{vVa+blk}, s6, v{vM}")
    A(f"v_and_b32 v{vM}, 3, v2\nv_lshlrev_b32 v{vM}, 3, v{vM}\nv_lshl_add_u32 v{vM}, v{vT}, 7, v{vM}\nv_add_u32 v{vWa2}, s6, v{vM}")
    A("s_and_b32 s40, s37, 1\ns_lshr_b32 s41, s37, 1\ns_lshl_b32 s42, s36, 4\ns_add_u32 s42, s42, s41")
    A("s_lshl_b32 s68, s40, 9\ns_lshl_b32 s69, s4, 7\ns_add_u32 s68, s68, s69")
    A("s_lshl_b32 s46, s42, 15\ns_add_u32 s46, s46, s68")
    A("s_mul_i32 s47, s42, 14\ns_and_b32 s47, s47, -4\ns_lshl_b32 s47, s47, 10\ns_add_u32 s47, s47, s68")
    A(f"s_mov_b32 s43, {fbits(LOG2E / math.sqrt(128))}")
    vQa = vG0 + 4
    A(f"v_and_b32 v{vM}, 3, v2\nv_lshlrev_b32 v{vQa}, 8, v{vM}\nv_lshl_add_u32 v{vQa}, v3, 4, v{vQa}\nv_add_u32 v{vQa}, {QB}, v{vQa}")
    vCw, vCr, vGw, vGrd, vL1, vP2, vLn = 216, 217, 218, 219, 220, 221, 222
    A(f"s_lshl_b32 s68, s4, 11\ns_add_u32 s68, s68, {COMB}\nv_lshlrev_b32 v{vCw}, 9, v{vM}\nv_lshl_add_u32 v{vCw}, v3, 4, v{vCw}\nv_add_u32 v{vCw}, s68, v{vCw}")
    A(f"s_lshl_b32 s68, s4, 9\ns_add_u32 s69, s68, {COMB}\nv_lshlrev_b32 v{vLn}, 3, v2\nv_add_u32 v{vCr}, s69, v{vLn}")
    A(f"s_add_u32 s69, s68, {GATH}\nv_add_u32 v{vGw}, s69, v{vLn}")
    A(f"v_bfe_u32 v{vLs}, v2, 2, 2\nv_lshlrev_b32 v{vGrd}, 9, v{vLs}\nv_lshl_add_u32 v{vGrd}, v{vM}, 7, v{vGrd}\nv_lshl_add_u32 v{vGrd}, v3, 4, v{vGrd}\nv_add_u32 v{vGrd}, {GATH}, v{vGrd}")
    A(f"v_lshlrev_b32 v{vL1}, 15, v3\nv_lshl_add_u32 v{vL1}, v4, 4, v{vL1}")
    A(f"v_lshlrev_b32 v{vP2}, 11, v{vM}\nv_lshl_add_u32 v{vP2}, v{vLs}, 6, v{vP2}\nv_lshl_add_u32 v{vP2}, v3, 4, v{vP2}")
    A(f"v_lshlrev_b32 v{vLn}, 4, v2")
    A("s_lshl_b32 s68, s36, 2\ns_add_u32 s68, s68, s38\ns_lshl_b32 s68, s68, 3\ns_add_u32 s68, s68, s39\ns_lshl_b32 s68, s68, 2\ns_add_u32 s68, s68, s4")
    A(f"s_lshl_b32 s24, s68, 6\ns_add_u32 s24, s24, {WS_ML}\ns_lshl_b32 s25, s68, 10\ns_add_u32 s25, s25, {WS_O1}")
    A(f"s_lshl_b32 s26, s36, 17\ns_lshl_b32 s68, s4, 13\ns_add_u32 s26, s26, s68\ns_lshl_b32 s68, s41, 8\ns_add_u32 s26, s26, s68\ns_add_u32 s26, s26, {WS_O1}\ns_add_u32 s28, s26, 4096")
    A(f"s_lshl_b32 s27, s40, 7\ns_add_u32 s27, s27, s42\ns_lshl_b32 s27, s27, 13\ns_lshl_b32 s68, s4, 9\ns_add_u32 s27, s27, s68\ns_add_u32 s27, s27, {WS_P2}")
    A("s_waitcnt lgkmcnt(0)")
    A("s_add_u32 s44, s44, 1\ns_xor_b32 s45, s44, 0xa5c3e1f7")
    A(f"v_mov_b32 v{vG0+2}, s44\nv_mov_b32 v{vG0+3}, s45\nv_mov_b32 v{vG0+6}, s44\nv_mov_b32 v{vG0+7}, s45")
    A(f"v_mov_b32 v{vM}, 0xff800000\nv_mov_b32 v{vLs}, 0")
    stamp(1)
    for t in range(infl, RSL):
        vm.wait(t - infl); issue(t)
    A("s_barrier")
    stamp(2)
    for m in range(4): A(f"ds_read_b128 v[{vQ+4*m}:{vQ+4*m+3}], v{vQa} offset:{64*m}")
    def kread(i):
        fb = vF + 16 * (i & 1)
        for m in range(4): A(f"ds_read_b128 v[{fb+4*m}:{fb+4*m+3}], v{vKa+m} offset:{(i%RSL)*4096}")
    def kmfma(i):
        fb = vF + 16 * (i & 1); d = vS + 4 * i
        for m in range(4):
            c = "0" if m == 0 else f"v[{d}:{d+3}]"
            A(f"v_mfma_f32_16x16x32_bf16 v[{d}:{d+3}], v[{fb+4*m}:{fb+4*m+3}], v[{vQ+4*m}:{vQ+4*m+3}], {c}")
    def kmax(i):
        d = vS + 4 * i
        A(f"v_max3_f32 v{vM}, v{vM}, v{d}, v{d+1}\nv_max3_f32 v{vM}, v{vM}, v{d+2}, v{d+3}")
    def pchunk(i0, i1):
        for i in range(i0, i1):
            d = vS + 4 * i
            for r in range(4): A(f"v_fma_f32 v{d+r}, v{d+r}, s43, -v{vM}")
            for r in range(4): A(f"v_exp_f32 v{d+r}, v{d+r}")
            p = vPp + 2 * i
            A(f"v_cvt_pk_bf16_f32 v{p}, v{d}, v{d+1}\nv_cvt_pk_bf16_f32 v{p+1}, v{d+2}, v{d+3}")
            A(f"v_add_f32 v{d}, v{d}, v{d+1}\nv_add_f32 v{d+2}, v{d+2}, v{d+3}\nv_add_f32 v{vLs}, v{vLs}, v{d}\nv_add_f32 v{vLs}, v{vLs}, v{d+2}")
    def pv(pi):
        s0 = (16 + 2 * pi) % RSL; s1 = (17 + 2 * pi) % RSL
        def rd(blk):
            A(f"ds_read_b64_tr_b16 v[{vF+4*blk}:{vF+4*blk+1}], v{vVa+blk} offset:{s0*4096}")
            A(f"ds_read_b64_tr_b16 v[{vF+4*blk+2}:{vF+4*blk+3}], v{vVa+blk} offset:{s1*4096}")
        for blk in range(6): rd(blk)
        for blk in range(8):
            left = min(8, blk + 6) - blk - 1
            A(f"s_waitcnt lgkmcnt({2*left})")
            c = "0" if pi == 0 else f"v[{vO+4*blk}:{vO+4*blk+3}]"
            A(f"v_mfma_f32_16x16x32_bf16 v[{vO+4*blk}:{vO+4*blk+3}], v[{vF+4*blk}:{vF+4*blk+3}], v[{vPp+4*pi}:{vPp+4*pi+3}], {c}")
            if blk + 6 < 8: rd(blk + 6)
    kread(0); kread(1)
    A("s_waitcnt lgkmcnt(4)")
    kmfma(0)
    vm.wait(RSL - infl); issue(RSL)
    done = RSL - infl
    for i in range(1, done + 1):
        if i + 1 <= done: kread(i + 1); A("s_waitcnt lgkmcnt(4)")
        else: A("s_waitcnt lgkmcnt(0)")
        kmfma(i); kmax(i - 1)
    nextpv = 0
    for tau in range(RSL + 1, 34):
        t = tau - infl
        vm.wait(t)
        if tau == 33 and warm: A(";WARM_BEGIN st")
        if tau == 33: stamp(4)
        issue(tau)
        if t < 16:
            kread(t); kmax(t - 1); A("s_waitcnt lgkmcnt(0)"); kmfma(t)
            if t == 15:
                kmax(15); allred("v_max_f32", vM, vT, rows=False)
                A(f"v_mul_f32 v{vM}, s43, v{vM}")
                pchunk(0, 4)
        elif t < 19:
            pchunk(4 * (t - 15), 4 * (t - 14))
            if t == 18:
                allred("v_add_f32", vLs, vT, rows=False)
                A(f"v_mov_b32 v{vG0}, v{vM}\nv_mov_b32 v{vG0+1}, v{vLs}\ns_mov_b64 exec, 15")
                A(f"buffer_store_dwordx4 v[{vG0}:{vG0+3}], v{vLn}, s[48:51], s24 offen sc1"); vm.issue("ml")
                A("s_mov_b64 exec, -1")
                stamp(3)
        else:
            while nextpv < 8 and 17 + 2 * nextpv <= t:
                pv(nextpv); nextpv += 1
    for t in range(34 - infl, 32):
        vm.wait(t)
        while nextpv < 8 and 17 + 2 * nextpv <= t:
            pv(nextpv); nextpv += 1
    assert nextpv == 8
    A("s_mov_b32 exec_lo, 0x000f000f\ns_mov_b32 exec_hi, 0x000f000f")
    for blk in range(8): A(f"ds_write_b128 v{vCw}, v[{vO+4*blk}:{vO+4*blk+3}] offset:{64*blk}")
    A("s_mov_b64 exec, -1")
    A(f"s_lshl_b32 s68, s4, 4\ns_add_u32 s68, s68, {WGT}\nv_mov_b32 v{vT}, s68")
    A("s_waitcnt lgkmcnt(0)\ns_barrier")
    A(f"ds_read_b128 v[{vQ}:{vQ+3}], v{vT}")
    for w in range(4): A(f"ds_read_b64 v[{vQ+4+2*w}:{vQ+5+2*w}], v{vCr} offset:{2048*w}")
    A(f"v_lshlrev_b32 v{vT}, 3, v2\nv_add_u32 v{vT}, {HB}, v{vT}\nv_and_b32 v{vT2_}, 3, v2\nv_lshlrev_b32 v{vT2_}, 2, v{vT2_}\nv_add_u32 v{vT2_}, {GVEC}, v{vT2_}")
    A("s_waitcnt lgkmcnt(3)")
    A(f"v_mul_f32 v{vG0}, v{vQ}, v{vQ+4}\nv_mul_f32 v{vG0+1}, v{vQ}, v{vQ+5}")
    for w in range(1, 4):
        A(f"s_waitcnt lgkmcnt({3-w})")
        A(f"v_fmac_f32 v{vG0}, v{vQ+w}, v{vQ+4+2*w}\nv_fmac_f32 v{vG0+1}, v{vQ+w}, v{vQ+5+2*w}")
    A(f"buffer_store_dwordx4 v[{vG0}:{vG0+3}], v{vLn}, s[48:51], s25 offen sc1"); vm.issue("o1")
    stamp(5)
    vH = vQ + 12; vOm = vQ + 14; vW2f = vF; vWof = vF + 16; vD2 = vS
    A(f"ds_read_b64 v[{vH}:{vH+1}], v{vT}\nds_read_b32 v{vOm}, v{vT2_}")
    vm.wait(33)
    so = (32 % RSL) * 4096; s2o = (33 % RSL) * 4096
    for t in range(4): A(f"ds_read_b64_tr_b16 v[{vW2f+2*t}:{vW2f+2*t+1}], v{vWa2} offset:{s2o+32*t}")
    for t in range(4):
        A(f"ds_read_b64_tr_b16 v[{vWof+4*t}:{vWof+4*t+1}], v{vWa2} offset:{so+32*t}")
        A(f"ds_read_b64_tr_b16 v[{vWof+4*t+2}:{vWof+4*t+3}], v{vWa2} offset:{so+32*t+2048}")
    A("s_waitcnt lgkmcnt(8)")
    for t in range(4): A(f"v_mfma_f32_16x16x16_bf16 v[{vD2+4*t}:{vD2+4*t+3}], v[{vW2f+2*t}:{vW2f+2*t+1}], v[{vH}:{vH+1}], 0")
    for r in range(16): A(f"v_mul_f32 v{vD2+r}, v{vD2+r}, v{vOm}")
    vR = vS + 16
    poll("o1", [f"buffer_load_dwordx4 v[{vR}:{vR+3}], v{vL1}, s[48:51], s26 offen sc1",
                f"buffer_load_dwordx4 v[{vR+4}:{vR+7}], v{vL1}, s[48:51], s28 offen sc1"], [vR, vR+4], sleeps[3])
    A(f"v_add_f32 v{vR}, v{vR}, v{vR+4}\nv_add_f32 v{vR+1}, v{vR+1}, v{vR+5}")
    A(f"ds_write_b64 v{vGw}, v[{vR}:{vR+1}]")
    A("s_waitcnt lgkmcnt(0)\ns_barrier")
    stamp(6)
    vB = vR + 8
    A(f"ds_read_b128 v[{vB}:{vB+3}], v{vGrd}\nds_read_b128 v[{vB+4}:{vB+7}], v{vGrd} offset:64")
    A("s_waitcnt lgkmcnt(0)")
    for mode in ("row_ror:4", "row_ror:8"):
        for e in range(8): A(f"v_add_f32_dpp v{vB+e}, v{vB+e}, v{vB+e} {mode} row_mask:0xf bank_mask:0xf")
    for e in range(4): A(f"v_cvt_pk_bf16_f32 v{vB+8+e}, v{vB+2*e}, v{vB+2*e+1}")
    for t in range(4):
        A(f"v_mfma_f32_16x16x32_bf16 v[{vD2+4*t}:{vD2+4*t+3}], v[{vWof+4*t}:{vWof+4*t+3}], v[{vB+8}:{vB+11}], v[{vD2+4*t}:{vD2+4*t+3}]")
    for t in range(4):
        for r in range(4):
            dst = vG0 + (r >> 1) * 4 + (r & 1)
            A(f"v_mov_b32_dpp v{dst}, v{vD2+4*t+r} quad_perm:[0,1,2,3] row_mask:0xf bank_mask:{1<<t:#x}")
    A(f"buffer_store_dwordx4 v[{vG0}:{vG0+3}], v{vP2}, s[48:51], s27 offen sc1")
    A(f"buffer_store_dwordx4 v[{vG0+4}:{vG0+7}], v{vP2}, s[48:51], s27 offen offset:256 sc1")
    stamp(7)
    if stamps:
        A("s_cmp_lg_u32 s4, 0\ns_cbranch_scc1 L_END")
        dump_stamps(8, 8, 2)
    A("s_endpgm")
    if warm: A(";WARM_END st WARM_ht_0")
    A("L_END:\ns_endpgm")

    head = HDR + f"; @launch grid=(256,1,1) block=(320,1,1) lds={LDS_BYTES}\n" + \
        f'.amdgcn_target "amdgcn-amd-amdhsa--gfx950"\n.text\n.globl {NAME}_kernel\n.p2align 8\n.type {NAME}_kernel,@function\n{NAME}_kernel:\n'
    tail = f""".section .rodata,"a"
.p2align 6
.amdhsa_kernel {NAME}_kernel
  .amdhsa_next_free_vgpr 224
  .amdhsa_next_free_sgpr 96
  .amdhsa_accum_offset 224
  .amdhsa_group_segment_fixed_size 0
  .amdhsa_kernarg_size 112
  .amdhsa_user_sgpr_count 2
  .amdhsa_user_sgpr_kernarg_segment_ptr 1
  .amdhsa_system_sgpr_workgroup_id_x 1
.end_amdhsa_kernel
"""
    L2 = fix_hazards(L)
    if warm:
        tmp = [l for l in L2]
        stub = "\n".join(f"WARM_{n}_0:" for n in ("hq", "st", "ht")) + "\n"
        L2 = add_pads(L2, head + stub, tail)
    return head + "\n".join(L2) + "\n" + tail

if __name__ == "__main__":
    kw = {}
    out = sys.argv[1]
    for a in sys.argv[2:]:
        k, v = a.split("=")
        kw[k] = eval(v)
    open(out, "w").write(gen(**kw))
```

```python
NAME = "gated_mix__gqa_block_cached__dense_activation_gelu__decode"
def gen(layout="prod", late=5, st="sc1", ld="sc1", sleep=1, hold=0, onewave=0, lateall=0, pre=0):
    L = []; A = L.append
    A(f"; @launch grid=(256,1,1) block=(320,1,1) lds=0")
    A('.amdgcn_target "amdgcn-amd-amdhsa--gfx950"\n.text')
    A(f".globl {NAME}_kernel\n.p2align 8\n.type {NAME}_kernel,@function\n{NAME}_kernel:")
    A("s_memrealtime s[20:21]")
    A("s_load_dwordx2 s[16:17], s[0:1], 104")
    A("v_lshrrev_b32 v1, 6, v0\nv_and_b32 v2, 63, v0\ns_nop 0\nv_readfirstlane_b32 s3, v1")
    A("s_and_b32 s36, s2, 7\ns_lshr_b32 s37, s2, 3\ns_lshr_b32 s38, s37, 3\ns_and_b32 s39, s37, 7")
    A("s_waitcnt lgkmcnt(0)")
    A("s_mov_b32 s8, s16\ns_mov_b32 s9, s17\ns_mov_b32 s10, 0x400000\ns_mov_b32 s11, 0x20000")
    A("s_load_dword s44, s[16:17], 0\ns_waitcnt lgkmcnt(0)\ns_add_u32 s44, s44, 1\ns_mov_b32 s45, s44")
    A("s_lshl_b32 s26, s2, 7\ns_add_u32 s26, s26, 0x8000000\ns_add_u32 s18, s16, s26\ns_addc_u32 s19, s17, 0")
    A("s_cmp_eq_u32 s3, 0\ns_cbranch_scc1 L_c")
    A("s_sub_u32 s4, s3, 1\nv_lshrrev_b32 v3, 4, v2\nv_and_b32 v4, 3, v2")
    A("s_lshl_b32 s40, s36, 2\ns_add_u32 s40, s40, s38")
    if layout in ("prod", "line", "x1"):
        A("s_lshl_b32 s27, s40, 3\ns_add_u32 s27, s27, s39\ns_lshl_b32 s27, s27, 10\ns_lshl_b32 s41, s4, 8\ns_add_u32 s27, s27, s41")
        A("v_lshlrev_b32 v5, 6, v4\nv_lshl_add_u32 v5, v3, 4, v5")
    elif layout == "c64":
        A("s_lshl_b32 s27, s39, 15\ns_lshl_b32 s41, s4, 11\ns_add_u32 s27, s27, s41\ns_lshl_b32 s41, s40, 6\ns_add_u32 s27, s27, s41")
        A("v_lshlrev_b32 v5, 13, v4\nv_lshl_add_u32 v5, v3, 4, v5")
    else:
        A("s_lshl_b32 s27, s39, 15\ns_lshl_b32 s41, s4, 11\ns_add_u32 s27, s27, s41\ns_lshl_b32 s41, s40, 5\ns_add_u32 s27, s27, s41")
        A("v_lshlrev_b32 v5, 13, v4\nv_lshrrev_b32 v6, 1, v3\nv_lshl_add_u32 v5, v6, 10, v5\nv_and_b32 v6, 1, v3\nv_lshl_add_u32 v5, v6, 4, v5")
    A("s_add_u32 s27, s27, 0x100000")
    A("v_mov_b32 v8, s44\nv_mov_b32 v9, s44\nv_mov_b32 v10, s44\nv_mov_b32 v11, s44")
    A("buffer_load_dword v12, v5, s[8:11], 0 offen\ns_waitcnt vmcnt(0)")
    if pre:
        A("v_mov_b32 v12, 0\nv_mov_b32 v13, 0\nv_mov_b32 v14, 0\nv_mov_b32 v15, 0\ns_mov_b32 exec_lo, 0x000f000f\ns_mov_b32 exec_hi, 0x000f000f")
        A(f"buffer_store_dwordx4 v[12:15], v5, s[8:11], s27 offen {['','sc1','','nt'][pre]}\ns_waitcnt vmcnt(0)\ns_mov_b64 exec, -1")
    A("s_sleep 64")
    if not lateall: A(f"s_cmp_lg_u32 s36, {late}\ns_cbranch_scc1 L_go")
    A("s_sleep 96\nL_go:")
    A("s_mov_b32 exec_lo, 0x000f000f\ns_mov_b32 exec_hi, 0x000f000f")
    A("s_memrealtime s[22:23]")
    if st.startswith("at"):
        A("s_mov_b64 exec, -1\nv_bfe_u32 v6, v2, 2, 1\nv_lshl_add_u32 v5, v6, 3, v5\ns_mov_b32 exec_lo, 0x00ff00ff\ns_mov_b32 exec_hi, 0x00ff00ff")
        op = {"atswap": "buffer_atomic_swap_x2 v[8:9]", "atumax": "buffer_atomic_umax_x2 v[8:9]", "atx2": "buffer_store_dwordx2 v[8:9]"}[st.split()[0]]
        A(f"{op}, v5, s[8:11], s27 offen sc1")
    else:
        A(f"buffer_store_dwordx4 v[8:11], v5, s[8:11], s27 offen {st}")
    A("s_waitcnt vmcnt(0)\ns_memrealtime s[24:25]\ns_waitcnt lgkmcnt(0)")
    A("s_cmp_lg_u32 s4, 0\ns_cbranch_scc1 L_end")
    A("v_mov_b32 v4, s22\nv_mov_b32 v5, s23\nv_mov_b32 v6, s24\nv_mov_b32 v7, s25\nv_mov_b32 v1, 0\ns_mov_b64 exec, 1\nglobal_store_dwordx4 v1, v[4:7], s[18:19] offset:16\ns_waitcnt vmcnt(0)\ns_endpgm")
    A("L_c:")
    if layout == "line":
        A("s_or_b32 s41, s36, s38\ns_bitcmp1_b32 s41, 0\ns_cbranch_scc1 L_ok")
        A("v_lshrrev_b32 v5, 3, v2\nv_lshlrev_b32 v5, 13, v5\nv_and_b32 v6, 7, v2\nv_lshl_add_u32 v5, v6, 4, v5")
        A("s_lshl_b32 s5, s39, 10\ns_lshr_b32 s41, s36, 1\ns_lshl_b32 s41, s41, 8\ns_add_u32 s5, s5, s41\ns_lshl_b32 s41, s38, 6\ns_add_u32 s5, s5, s41\ns_add_u32 s5, s5, 0x100000")
        A("s_add_u32 s6, s5, 0x10000\ns_add_u32 s7, s5, 0x20000\ns_add_u32 s12, s5, 0x30000")
        A("buffer_load_dword v12, v5, s[8:11], 0 offen\ns_waitcnt vmcnt(0)\ns_sleep 64\ns_mov_b32 s34, 20000\nL_p2:")
        for i, r in enumerate((5, 6, 7, 12)): A(f"buffer_load_dwordx4 v[{12+4*i}:{15+4*i}], v5, s[8:11], s{r} offen sc1")
        A("s_waitcnt vmcnt(0)")
        A("v_cmp_ne_u64 vcc, s[44:45], v[14:15]\nv_cmp_ne_u64 s[50:51], s[44:45], v[18:19]\nv_cmp_ne_u64 s[52:53], s[44:45], v[22:23]\nv_cmp_ne_u64 s[54:55], s[44:45], v[26:27]\ns_nop 1\ns_or_b64 s[50:51], s[50:51], vcc\ns_or_b64 s[52:53], s[52:53], s[54:55]\ns_or_b64 s[50:51], s[50:51], s[52:53]\ns_cbranch_scc0 L_ok\ns_sub_u32 s34, s34, 1\ns_cbranch_scc1 L_ok\ns_branch L_p2")
    if layout == "xsame":
        pass
    if layout in ("prod", "line"):
        A("v_lshrrev_b32 v5, 1, v2\nv_lshlrev_b32 v5, 13, v5\nv_and_b32 v6, 1, v2\nv_lshl_add_u32 v5, v6, 4, v5")
        A("s_lshl_b32 s5, s39, 10\ns_lshr_b32 s41, s36, 1\ns_lshl_b32 s41, s41, 8\ns_add_u32 s5, s5, s41\ns_lshl_b32 s41, s38, 6\ns_add_u32 s5, s5, s41\ns_and_b32 s41, s36, 1\ns_lshl_b32 s41, s41, 5\ns_add_u32 s5, s5, s41")
    elif layout == "x1":
        A("v_lshrrev_b32 v5, 1, v2\nv_lshlrev_b32 v5, 13, v5\nv_and_b32 v6, 1, v2\nv_lshl_add_u32 v5, v6, 4, v5")
        A("s_lshl_b32 s5, s36, 10\ns_lshl_b32 s41, s37, 5\ns_add_u32 s5, s5, s41")
    elif layout == "c64":
        A("v_lshlrev_b32 v5, 4, v2\ns_lshl_b32 s5, s39, 15\ns_lshl_b32 s41, s38, 13\ns_add_u32 s5, s5, s41\ns_lshl_b32 s41, s36, 10\ns_add_u32 s5, s5, s41")
    else:
        A("v_lshlrev_b32 v5, 4, v2\ns_lshl_b32 s5, s39, 15\ns_lshl_b32 s41, s38, 13\ns_add_u32 s5, s5, s41\ns_lshl_b32 s41, s36, 10\ns_add_u32 s5, s5, s41")
    A("s_add_u32 s5, s5, 0x100000")
    A("buffer_load_dword v12, v5, s[8:11], 0 offen\ns_waitcnt vmcnt(0)")
    A("s_sleep 64")
    if hold: A(f"s_sleep {hold}")
    A(f"s_mov_b32 s34, 20000\nL_p:\nbuffer_load_dwordx4 v[8:11], v5, s[8:11], s5 offen {ld}\ns_waitcnt vmcnt(0)")
    A("v_cmp_ne_u64 vcc, s[44:45], v[10:11]\ns_cmp_eq_u64 vcc, 0\ns_cbranch_scc1 L_ok\ns_sub_u32 s34, s34, 1\ns_cbranch_scc1 L_ok")
    if sleep: A(f"s_sleep {sleep}")
    A("s_branch L_p\nL_ok:\ns_memrealtime s[24:25]\ns_waitcnt lgkmcnt(0)")
    A("v_mov_b32 v4, s20\nv_mov_b32 v5, s21\nv_mov_b32 v6, s24\nv_mov_b32 v7, s25\nv_mov_b32 v1, 0\ns_mov_b64 exec, 1\nglobal_store_dwordx4 v1, v[4:7], s[18:19]")
    A("s_cmp_lg_u32 s2, 0\ns_cbranch_scc1 L_e2\nv_mov_b32 v4, s44\nglobal_store_dword v1, v4, s[16:17]\nL_e2:\ns_waitcnt vmcnt(0)")
    A("L_end:\ns_endpgm")
    A(f""".section .rodata,"a"
.p2align 6
.amdhsa_kernel {NAME}_kernel
  .amdhsa_next_free_vgpr 32
  .amdhsa_next_free_sgpr 64
  .amdhsa_accum_offset 32
  .amdhsa_group_segment_fixed_size 0
  .amdhsa_kernarg_size 112
  .amdhsa_user_sgpr_count 2
  .amdhsa_user_sgpr_kernarg_segment_ptr 1
  .amdhsa_system_sgpr_workgroup_id_x 1
.end_amdhsa_kernel""")
    return "\n".join(L) + "\n"
import sys
names = []
for c in eval(sys.argv[1]):
    fn = "m12_" + "_".join(f"{k}{str(v).replace(' ','')}" for k, v in c.items()) + ".s"; open(fn,"w").write(gen(**c)); names.append(fn)
print(" ".join(names))
```
